```python
import torch

def _softmax(x, axis=-1):
    return torch.softmax(x, dim=axis)
def _gelu(x):
    return torch.nn.functional.gelu(x, approximate="tanh")
def _silu(x):
    return torch.nn.functional.silu(x)
def _sigmoid(x):
    return torch.sigmoid(x)
def _layernorm(x, axis=-1, eps=1e-5):
    m = x.mean(dim=axis, keepdim=True)
    v = x.var(dim=axis, keepdim=True, unbiased=False)
    return (x - m) / torch.sqrt(v + eps)
def _scatter_add(tgt, idx, src, axis=0):
    return tgt.clone().index_add_(axis, idx, src)
def _segment_sum(src, seg, n):
    out = torch.zeros((n,) + src.shape[1:], dtype=src.dtype)
    return out.index_add_(0, seg, src)
def _pad(x, pw):
    flat = tuple(v for pair in reversed(pw) for v in pair)
    return torch.nn.functional.pad(x, flat)

kernel_name = 'standalone__gqa_softmax__near_ridge'

def setup_inputs():

    _w = (lambda a: (lambda t: t.to(torch.bfloat16) if t.is_floating_point() else t)(torch.as_tensor(a)))
    B, Hq, Hkv, Sq, Sk, D = 8, 32, 8, 512, 512, 128
    return {
        "q": _w((lambda *s: torch.randn(*s, dtype=torch.bfloat16) * 0.8)(B, Hq, Sq, D)),
        "k": _w((lambda *s: torch.randn(*s, dtype=torch.bfloat16) * 0.8)(B, Hkv, Sk, D)),
        "v": _w((lambda *s: torch.randn(*s, dtype=torch.bfloat16) * 0.05)(B, Hkv, Sk, D)),
    }

def reference(q, k, v):
    B, Hq, Sq, D = q.shape
    Hkv = k.shape[1]
    rep = Hq // Hkv
    k = (lambda x, n, axis: torch.repeat_interleave(x, n, dim=axis))(k, rep, axis=1)
    v = (lambda x, n, axis: torch.repeat_interleave(x, n, dim=axis))(v, rep, axis=1)
    scale = D ** -0.5
    scores = torch.einsum("bhqd,bhkd->bhqk", q, k) * scale
    p = _softmax(scores, axis=-1)
    return torch.einsum("bhqk,bhkd->bhqd", p, v)
```

```python
import re
class Ins:
    __slots__=("t","k","rd","wr","meta")
    def __init__(s,t,k,rd=(),wr=(),**meta):
        s.t=t; s.k=k; s.rd=set(rd); s.wr=set(wr); s.meta=meta
def R(p,b,n=1): return f"{p}{b}" if n==1 else f"{p}[{b}:{b+n-1}]"
def regs(p,b,n=1): return [f"{p}{i}" for i in range(b,b+n)]
def opregs(op):
    m=re.fullmatch(r"-?([va])(\d+)",op)
    if m: return [m.group(1)+m.group(2)]
    m=re.fullmatch(r"([va])\[(\d+):(\d+)\]",op)
    if m: return regs(m.group(1),int(m.group(2)),int(m.group(3))-int(m.group(2))+1)
    return []
def mfma(d,a,b,c,**meta):
    return Ins(f"v_mfma_f32_16x16x32_bf16 {d}, {a}, {b}, {c}","mfma",opregs(a)+opregs(b)+opregs(c),opregs(d),c=set(opregs(c)),d=d,cs=c,**meta)
def valu(op,d,*src,**meta):
    k="trans" if op in("v_exp_f32","v_rcp_f32") else ("perm" if op.startswith("v_permlane") else "valu")
    rd=[r for s in src for r in opregs(s)]; wr=opregs(d)
    if k=="perm": rd+=wr; wr=list(rd)
    return Ins(f"{op} {d}, "+", ".join(src),k,rd,wr,**meta)
def salu(t,**meta): return Ins(t,"salu",**meta)
def isv(i): return i.k in("valu","trans","perm")
def hazards(L):
    out=[]; nn=0
    def states(i):
        if i.k=="nop": return i.meta["n"]
        if i.k in("label","wait"): return 0
        return 1
    for ins in L:
        need=0; dist=0
        for p in reversed(out[-24:]):
            req=0
            if p.k=="mfma":
                if ins.k=="mfma":
                    ab=ins.rd-ins.meta["c"] if ins.meta["cs"]==p.meta["d"] else ins.rd
                    if p.wr&ab: req=8
                    elif p.wr&ins.wr and ins.meta["cs"]!=p.meta["d"]: req=8
                elif p.wr&(ins.rd|ins.wr): req=8
                if isv(ins) and p.meta["c"]&ins.wr: req=max(req,3)
            if isv(p):
                if ins.k in("mfma","perm") and p.wr&ins.rd: req=2
                if p.k=="trans" and p.wr&ins.rd: req=max(req,1)
                if p.meta.get("wsgpr") and ins.k in("vmem",) : req=max(req,5)
                if p.meta.get("wsgpr") and isv(ins): req=max(req,2)
                if ins.meta.get("rfl") and p.wr&ins.rd: req=max(req,1)
            if p.k=="vmem" and p.meta.get("store") and p.meta["data"]&ins.wr: req=2
            if p.k=="salu" and p.meta.get("m0") and ins.meta.get("dma"): req=1
            need=max(need,req-dist)
            dist+=states(p)
        if need>0:
            out.append(Ins(f"s_nop {need-1}","nop",n=need)); nn+=1
        out.append(ins)
    return out,nn
def waits(L, group=3):
    out=[]; ds=[]; vm=[]
    gi=0
    for ins in L:
        if ins.k=="mfma": gi+=1
        touch=ins.rd|ins.wr
        nd=None; nv=None
        for i,(p,g) in enumerate(ds):
            if p.wr&touch or p.meta.get("tag") in ins.meta.get("ds_tags",()): nd=i
        for i,(p,g) in enumerate(vm):
            if p.wr&touch or p.meta.get("tag") in ins.meta.get("vm_tags",()): nv=i
        w=[]
        if nv is not None:
            n=len(vm)-1-nv; assert n<=63 or True
            w.append(f"vmcnt({min(n,63)})"); vm=vm[nv+1:] if n<=63 else vm[len(vm)-63:]
        if nd is not None:
            k=0
            while k<group and nd+1<len(ds) and ds[nd+1][1]<=gi-6: nd+=1; k+=1
            n=len(ds)-1-nd
            w.append(f"lgkmcnt({min(n,15)})"); ds=ds[nd+1:] if n<=15 else ds[len(ds)-15:]
        if w: out.append(Ins("s_waitcnt "+" ".join(w),"wait"))
        out.append(ins)
        if ins.k=="ds": ds.append((ins,gi))
        if ins.k=="vmem": vm.append((ins,gi))
        if ins.meta.get("drain"): ds=[]; vm=[]
    return out
```

```python
import sys, json, struct
from asmlib import *
CFG=dict(start=[0,4,8,12,16,20,24,28], mode="pre", vpad=8, gdma=1, lookK=260, lookV=260, lookQ=300, prew=200, stamps=0,
         vearly=[6,5,4,3,2,1,0,5,4,3], thr=0x4e800000, nslow=0, dslead=8, npro=150, force_slow=0)
for a in sys.argv[2:]:
    k,v=a.split("="); CFG[k]=json.loads(v) if v[0] in "[0123456789-" else v
C=type("C",(),CFG)
KN="standalone__gqa_softmax__near_ridge_kernel"
START=C.start; NS=START[-1]+16; PRE=C.mode=="pre"
VB=1024+C.vpad; VS=8*VB; VWIN=98304
def vslot(i): return 163840-(i+1)*VS
vK=1; vV=5; vDK=9; vDV=11; vQ=12; PT=(13,14,15,93); STG=16; LAND=32; NEGM=48; SB=64; PB=80; TM=88; TM2=89; RL=90; RR=91; OB=96
aK=0; aV=64; aQ=128; aL=208; aONE=228
CSC=struct.unpack("<I",struct.pack("<f",1.4426950408889634*128**-0.5))[0]
def O(j): return OB+32*(j%5)
def land(j): return {1:O(4),2:O(4)+16}.get(j,LAND)
units=[(t,j) for t in range(NS) for j in range(8) if START[j]<=t<START[j]+16]
nU=len(units); assert nU==128
first={}; last={}; ufirst={}; ulast={}
for u,(t,j) in enumerate(units):
    first.setdefault(t,u); last[t]=u; ufirst.setdefault(j,u); ulast[j]=u
M=[]; qk={}; pv={}; s0={}
for u in range(nU+2):
    s0[u]=len(M)
    if u<nU:
        t,j=units[u]; qk[u]=[]
        for kb in range(2):
            for ks in range(4):
                d=R("v",SB+8*(u&1)+4*kb,4)
                c=d if ks else (R("v",NEGM+4*(j%4),4) if PRE and u!=ufirst[j] else "0")
                qk[u].append(len(M)); M.append(mfma(d,R("a",aK+32*(t&1)+16*kb+4*ks,4),R("a",aQ+16*(j%5)+4*ks,4),c))
    if u>=2:
        x=u-2; t,j=units[x]; pv[x]=[]; p=R("v",PB+4*(x&1),4); f=x==ufirst[j]
        for db in range(8):
            d=R("v",O(j)+4*db,4)
            pv[x].append(len(M)); M.append(mfma(d,R("a",aV+32*(t&1)+4*db,4),p,"0" if f else d))
        d=R("a",aL+4*(j%5),4)
        pv[x].append(len(M)); M.append(mfma(d,R("a",aONE,4),p,"0" if f else d))
NG=len(M); s0[nU+2]=NG; TAIL=NG+400
B={t:qk[first[t]][0] for t in range(NS)}; B[0]=-1
class T:
    n=0
    def __init__(s,ins,cost,rel,pd,hd,deps=(),cls=1):
        s.ins=ins if isinstance(ins,list) else [ins]; s.cost=cost; s.rel=rel; s.pd=min(pd,hd); s.hd=hd; s.deps=list(deps); s.cls=cls
        s.soft=0; s.gap=None; s.id=T.n; T.n+=1; tasks.append(s)
tasks=[]
def chain(lst,rel,p0,p1,hd,deps=()):
    prev=None; out=[]
    for i,(ins,cost) in enumerate(lst):
        l=ins if isinstance(ins,list) else [ins]; cls=0 if any(x.k in("vmem","ds") for x in l) else 1
        d=list(deps) if prev is None else [(prev,1 if (cls==0 or prev.ins[-1].k=="trans" or l[0].k=="perm") else 0)]
        prev=T(ins,cost,rel,int(p0+(p1-p0)*i/max(1,len(lst))),hd,d,cls); out.append(prev)
    return out
def maxchain(S,nm):
    v=lambda i:f"v{S+i}"; m=f"v{TM}"; m2=f"v{TM2}"
    L=[(valu("v_max3_f32",m,v(0),v(1),v(2)),1),(valu("v_max3_f32",m,m,v(3),v(4)),1),(valu("v_max3_f32",m,m,v(5),v(6)),1),
       (valu("v_max_f32",m,v(7),m),1),(valu("v_mov_b32",m2,m),1),(valu("v_permlane32_swap_b32",m,m2),2),(valu("v_max_f32",m,m2,m),1),
       (valu("v_mov_b32",m2,m),1),(valu("v_permlane16_swap_b32",m,m2),2),(valu("v_max_f32",m,m2,m),1)]
    L.append((valu("v_sub_f32",f"v{nm}","0",m),1) if PRE else (valu("v_mul_f32",f"v{nm}","s37",m),1))
    return L
for u,(t,j) in enumerate(units):
    S=SB+8*(u&1); P=PB+4*(u&1); nm=NEGM+4*(j%4); a=s0[u+1]; n=s0[u+2]-a
    hdc=[min(qk[u+2][4*(c>>1)]-1 if u+2<nU else TAIL, pv[u][0]-2) for c in range(4)]
    dep0=[]
    if u==ufirst[j]:
        r=qk[u][7]+3; ch=chain(maxchain(S,nm),r,r,r+6,hdc[0]-4); dep0=[(ch[-1],0)]
        for x in ch: x.soft=3
        if PRE:
            nu=[x for x in range(u+1,nU) if units[x][1]==j][0]
            for i in range(1,4): T(valu("v_mov_b32",f"v{nm+i}",f"v{nm}"),1,r,r+10,max(qk[nu][0]-2,r-3),dep0).soft=3
            for x in ch: x.hd=min(x.hd,max(qk[nu][0]-2,r-3)); x.pd=min(x.pd,x.hd)
    pe=None; pf=None; ex=[]
    for e in range(8):
        rel=qk[u][4*(e>>2)+3]+4; pd=a+(2*e+1)*n//17; hd=hdc[e>>1]-1; d=[]
        if not PRE: f=valu("v_fma_f32",f"v{S+e}",f"v{S+e}","s34",f"v{nm}")
        elif u==ufirst[j]: f=valu("v_add_f32",f"v{S+e}",f"v{nm}",f"v{S+e}")
        else: f=None
        if f: pf=T(f,1,rel,pd-1,hd,dep0+([(pf,0)] if pf else [])); d.append((pf,0)); pf.soft=4
        pe=T(valu("v_exp_f32",f"v{S+e}",f"v{S+e}"),2,rel,pd,hd,d+([(pe,0)] if pe else [])); ex.append(pe); pe.soft=4
    for c in range(4):
        T(valu("v_cvt_pk_bf16_f32",f"v{P+c}",f"v{S+2*c}",f"v{S+2*c+1}"),1,pv[u-2][8] if u>=2 else 0,a+(4*c+4)*n//17,hdc[c],[(ex[2*c+1],1)])
bar={t:dict(vm=set(),ds=set(),need=False) for t in range(-1,NS)}
def kread(t,f):
    kt=t%16; d=aK+32*(t&1)+4*f
    return Ins(f"ds_read_b128 {R('a',d,4)}, v{vK+(f&3)} offset:{(kt&7)*8192+(f>>2)*4096}","ds",[f"v{vK+(f&3)}"],regs("a",d,4),tag=f"rK{t}")
KR={}; prevk=None
for t in range(1,NS):
    KR[t]=[]
    if t<16: bar[t-1]["vm"].add(f"K{t}"); bar[t-1]["need"]=True
    tog=[]
    if t%8==0: tog=[T(valu("v_xor_b32",f"v{vK+i}","0x10000",f"v{vK+i}"),1,0,0,qk[first[t]][0]-C.dslead-1,[(prevk,0)]) for i in range(4)]
    for f in range(8):
        rel=max(qk[last[t-2]][f] if t>=2 else 0, B[t-1]+1 if t<16 else 0); hd=max(rel,qk[first[t]][f]-C.dslead)
        prevk=T(kread(t,f),1,rel,hd-4,hd,([(prevk,0)] if prevk else [])+[(x,1) for x in tog],0); KR[t].append(prevk)
Vx={}; VR={}; prevv=None; vs={}
ring=0
for s in range(NS):
    Vx[s]=max(x for x in range(NS) if x==0 or pv[first[s]][0]-B[x]>=22)
    bar[Vx[s]]["vm"].add(f"V{s}"); bar[Vx[s]]["need"]=True
    if s<len(C.vearly): vs[s]=C.vearly[s]
    elif s>=35 and NS>35: vs[s]=[6,5,4,3,vs[32],vs[33],vs[34]][(s-35)%7]
    else: vs[s]=2-ring%3; ring+=1
    VR[s]=[]
    for db in range(8):
        for h in range(2):
            d=aV+32*(s&1)+4*db+2*h; off=vslot(vs[s])-VWIN+h*4*VB+8*(db&1); assert 0<=off<65536
            ins=Ins(f"ds_read_b64_tr_b16 {R('a',d,2)}, v{vV+(db>>1)} offset:{off}","ds",[f"v{vV+(db>>1)}"],regs("a",d,2),tag=f"rV{s}")
            rel=max(pv[last[s-2]][db] if s>=2 else 0,B[Vx[s]]+1); hd=max(rel,pv[first[s]][db]-C.dslead)
            prevv=T(ins,1,rel,hd-8,hd,[(prevv,0)] if prevv else [],0); VR[s].append(prevv)
occ=[]
for t in range(16):
    lt=max(x for x in range(NS) if x%16==t)
    occ.append((B[t-1] if t else -2,f"K{t}",t*8192,t*8192+8192,max(x.hd for x in KR[lt]) if lt else 0,f"rK{lt}"))
for s in range(NS): occ.append((B[Vx[s]]+0.5,f"V{s}",vslot(vs[s]),vslot(vs[s])+VS,max(x.hd for x in VR[s]),f"rV{s}"))
def dma(name,h):
    i=int(name[1:]); L=[]
    if name[0]=="K": kt=i; sp,sb,m0,va,off=24,20,f"s29, {kt*8192+h*4096}",vDK+h,0
    else: kt=i%16; sp,sb,m0,va,off=26,22,f"s30, {vslot(vs[i])+h*C.vpad}",vDV,1024*h
    L.append(salu(f"s_add_u32 m0, {m0}",m0=1))
    if h==0: L+= [salu(f"s_add_u32 s{sp}, s{sb}, {kt*8192}"),salu(f"s_addc_u32 s{sp+1}, s{sb+1}, 0")]
    L.append(Ins(f"global_load_lds_dwordx4 v{va}, s[{sp}:{sp+1}] offset:{off}","vmem",[f"v{va}"],[],dma=1,tag=name))
    return L
def qload(j,ks):
    d=(R("v",land(j)+4*ks,4) if PRE else R("a",aQ+16*(j%5)+4*ks,4))
    L=[salu(f"s_add_u32 s32, s31, {j*4096}")] if ks==0 else []
    return L+[Ins(f"buffer_load_dwordx4 {d}, v{vQ}, s[12:15], s32 offen offset:{64*ks}","vmem",[f"v{vQ}"],opregs(d))]
def prescale(j):
    L=[]
    for i in range(16):
        x=f"v{land(j)+i}"; a,b=f"v{PT[2*(i&1)]}",f"v{PT[2*(i&1)+1]}"
        L+=[valu("v_lshlrev_b32",a,"16",x),valu("v_and_b32",b,"s35",x),valu("v_mul_f32",a,"s34",a),valu("v_mul_f32",b,"s34",b),
            valu("v_cvt_pk_bf16_f32",x,a,b),valu("v_accvgpr_write_b32",f"a{aQ+16*(j%5)+i}",x)]
    return L
loads=[]
for o in occ:
    fr=-1
    for p in occ:
        if p[0]<o[0] and p[2]<o[3] and o[2]<p[3]:
            y=min(x for x in range(NS) if B[x]>=p[4]+4); bar[y]["ds"].add(p[5]); bar[y]["need"]=True; fr=max(fr,B[y])
    assert fr<0 or fr<o[0]-20,(o,fr)
    loads.append((o[0],fr+1 if fr>=0 else -10**6,C.lookK if o[1][0]=="K" else C.lookV,[dma(o[1],h) for h in range(2)],o[1]))
pw={}
for j in range(8):
    e=qk[ufirst[j]][0]-2
    pw[j]=(max(e-C.prew,(pw[j-1][1]+ (e-pw[j-1][1])//3) if j else -3),e) if PRE else (e,e)
    if j==0: pw[0]=(-3,-3)
    rel=-10**6
    if PRE and j>=3: rel=pw[j-1 if j>3 else 0][1]+1
    if not PRE and j>=5: rel=qk[ulast[j-5]][7]
    loads.append((pw[j][0],rel,C.lookQ,[qload(j,ks) for ks in range(4)],f"Q{j}"))
loads.sort(key=lambda x:x[0])
proloads=[]; QL={}; prev=None; inpro=True
for need,rel,look,il,key in loads:
    if inpro and rel<0 and need<=C.npro: proloads+=[i for l in il for i in l]; continue
    inpro=False
    for l in il:
        r=max(rel,int(need)-look,0); prev=T(l,2,r,r,max(r,int(need)-1),[(prev,0)] if prev else [],0)
    QL[key]=prev
PS={}
for j in range(1,8):
    if PRE:
        rel=max(pw[j][0],qk[ulast[j-5]][7] if j>=5 else 0)
        PS[j]=chain([(i,1) for i in prescale(j)],rel,rel,pw[j][1],pw[j][1],([(QL[f"Q{j}"],1)] if f"Q{j}" in QL else [])+([(PS[j-1][-1],0)] if j>1 else []))
def norm(j):
    o=O(j); L=[(valu("v_accvgpr_read_b32",f"v{RL}",f"a{aL+4*(j%5)}"),1),
       ([Ins(f"v_cmp_ngt_f32 vcc, s36, v{RL}","valu",[f"v{RL}"],[]),salu("s_or_b64 s[38:39], s[38:39], vcc")],1),(valu("v_rcp_f32",f"v{RR}",f"v{RL}"),2)]
    for n in range(4):
        L+=[(valu("v_mul_f32",f"v{o+8*n+i}",f"v{RR}",f"v{o+8*n+i}"),1) for i in range(8)]
        L+=[(valu("v_cvt_pk_bf16_f32",f"v{STG+4*n+i}",f"v{o+8*n+2*i}",f"v{o+8*n+2*i+1}"),1) for i in range(4)]
        d=regs("v",STG+4*n,4)
        L.append((([salu(f"s_add_u32 s33, s31, {j*4096}")] if n==0 else [])+[Ins(f"buffer_store_dwordx4 {R('v',STG+4*n,4)}, v{vQ}, s[16:19], s33 offen offset:{64*n}","vmem",d+[f"v{vQ}"],[],store=1,data=set(d))],2))
    return L
pn=None
for j in range(8):
    rel=pv[ulast[j]][8]+4; hd=TAIL
    if j+5<8: hd=pv[ufirst[j+5]][0]-3
    if j+1<8: hd=min(hd,max(pv[ulast[j+1]][8]+3,rel+30))
    pn=chain(norm(j),rel,rel,min(hd,rel+150),hd,[(pn[-1],0)] if pn else [])
for t in range(1,NS):
    if bar[t]["need"]: T(Ins("s_barrier","bar",vm_tags=bar[t]["vm"],ds_tags=bar[t]["ds"]),2,B[t],B[t],B[t],[],-1)
gaps=[[] for _ in range(TAIL+1)]; used=[0]*(TAIL+1); forced=set()
def place(x,g,fo=False):
    for d,dist in x.deps:
        if d.gap is None: assert fo; place(d,g,True)
        if d.gap==g and x.cls<d.cls: forced.add(g)
    assert x.rel-x.soft<=g,(x.ins[0].t,x.rel,g)
    x.gap=g; gaps[g].append(x); used[g]+=x.cost
pend=sorted(tasks,key=lambda x:(x.rel,x.id)); act=[]; pi=0
for g in range(TAIL+1):
    while pi<len(pend) and min(pend[pi].rel,pend[pi].hd)<=g: act.append(pend[pi]); pi+=1
    for x in sorted([x for x in tasks if x.gap is None and x.hd<=g],key=lambda x:(x.cls>=0,x.id)):
        if x.gap is None: place(x,g,True)
    while used[g]<2:
        act=[x for x in act if x.gap is None]
        rd=sorted([x for x in act if x.rel<=g and all(d.gap is not None and d.gap+dist<=g for d,dist in x.deps)],key=lambda x:(x.pd,x.id))
        rd=[x for x in rd if x.cost<=2-used[g]]
        if not rd: break
        x=rd[0]
        if used[g]==0 and x.cost==1:
            more=any(y.cost==1 for y in rd[1:]) or any(y.cost==1 and y.rel<=g and any(d is x and dist==0 for d,dist in y.deps) and all(d is x or (d.gap is not None and d.gap+dist<=g) for d,dist in y.deps) for y in act)
            two=[y for y in rd if y.cost==2]
            if not more and two and x.hd>g+1: x=two[0]
        place(x,g)
assert all(x.gap is not None for x in tasks)
over=sum(max(0,used[g]-2) for g in range(NG)); idle=sum(max(0,2-used[g]) for g in range(NG))
L=[]
def S_(txt):
    for l in txt.strip().split("\n"): L.append(salu(l.strip()))
def V_(op,d,*s,**m): L.append(valu(op,d,*s,**m))
nst=[0]
def stamp():
    if C.stamps and nst[0]<24:
        L.append(Ins(f"s_memrealtime s[{46+2*nst[0]}:{47+2*nst[0]}]","salu")); L.append(Ins("s_waitcnt lgkmcnt(0)","wait")); nst[0]+=1
S_("s_cmp_ge_u32 s2, 256\ns_cbranch_scc1 L_end\ns_load_dwordx4 s[4:7], s[0:1], 0\ns_load_dwordx4 s[8:11], s[0:1], 16")
if C.stamps: S_("s_memtime s[96:97]\ns_load_dwordx2 s[40:41], s[0:1], 40"); stamp()
V_("v_lshrrev_b32","v13","6","v0"); V_("v_and_b32","v14","15","v0"); V_("v_bfe_u32","v15","v0","4","2")
L.append(Ins("v_readfirstlane_b32 s28, v13","valu",["v13"],[],rfl=1,wsgpr=1))
V_("v_lshlrev_b32","v88","8","v14"); V_("v_lshl_add_u32",f"v{vQ}","v15","4","v88")
S_("""s_and_b32 s3, s2, 7
s_lshr_b32 s42, s2, 3
s_lshl_b32 s3, s3, 5
s_add_u32 s3, s3, s42
s_lshr_b32 s42, s3, 2
s_lshl_b32 s42, s42, 17
s_lshl_b32 s31, s3, 17
s_lshl_b32 s43, s28, 15
s_add_u32 s31, s31, s43
s_lshl_b32 s29, s28, 10""")
S_(f"s_mul_i32 s30, s28, {2*VB}\ns_mov_b32 s14, 0x2000000\ns_mov_b32 s15, 0x20000\ns_mov_b32 s18, 0x2000000\ns_mov_b32 s19, 0x20000")
V_("v_lshl_add_u32","v89","v13","2","v15"); V_("v_xor_b32","v90","v14","v89"); V_("v_lshlrev_b32","v89","8","v89")
V_("v_lshl_add_u32",f"v{vDK}","v90","4","v89"); V_("v_add_u32",f"v{vDK+1}","0x1000",f"v{vDK}")
V_("v_lshlrev_b32","v89","2","v15"); V_("v_xor_b32","v89","v14","v89"); V_("v_lshlrev_b32","v89","4","v89")
V_("v_lshl_add_u32","v89","v15","8","v89"); V_("v_lshl_add_u32",f"v{vDV}","v13","11","v89")
L.append(Ins("s_waitcnt lgkmcnt(0)","wait"))
S_("""s_mov_b32 s12, s4
s_mov_b32 s13, s5
s_add_u32 s20, s6, s42
s_addc_u32 s21, s7, 0
s_add_u32 s22, s8, s42
s_addc_u32 s23, s9, 0""")
L+=proloads
S_(f"s_mov_b32 s16, s10\ns_mov_b32 s17, s11\ns_mov_b32 s34, {CSC:#x}\ns_mov_b32 s35, 0xffff0000\ns_mov_b32 s36, {C.thr:#x}\ns_mov_b32 s37, {CSC|0x80000000:#x}\ns_mov_b64 s[38:39], {-1 if C.force_slow else 0}")
for ks in range(4):
    V_("v_add_u32","v89",str(4*ks),"v15"); V_("v_xor_b32","v89","v14","v89"); V_("v_lshl_add_u32",f"v{vK+ks}","v89","4","v88")
V_("v_bfe_u32","v89","v0","2","2"); V_("v_and_b32","v90","3","v0"); V_("v_mul_u32_u24","v91",str(VB),"v15")
V_("v_lshl_add_u32","v91","v89","8","v91"); V_("v_lshl_add_u32","v91","v90","4","v91"); V_("v_add_u32","v91",hex(VWIN),"v91")
for n in range(4):
    V_("v_xor_b32","v90",str(n),"v89"); V_("v_lshl_add_u32",f"v{vV+n}","v90","6","v91")
V_("v_mov_b32","v89","0x3f803f80")
for i in range(4): V_("v_accvgpr_write_b32",f"a{aONE+i}","v89")
ps=prescale(0) if PRE else []
L+=ps[:72]
stamp()
L.append(Ins("s_barrier","bar",vm_tags={"K0"},ds_tags=set()))
L+=[kread(0,f) for f in range(8)]
L+=ps[72:]
L.append(Ins("s_barrier","bar",vm_tags=bar[0]["vm"],ds_tags=set()))
stamp()
stg={qk[first[t]][0] for t in range(NS) if t%2==0 and t>0}
for g in range(TAIL+1):
    if g in stg: stamp()
    if g<NG: L.append(M[g])
    xs=gaps[g] if g in forced or g>=NG else sorted(gaps[g],key=lambda x:x.cls)
    post=[]
    for x in xs: L+=x.ins
L=waits(L)
L,nn=hazards(L)
body=[i.t for i in L]
if C.stamps:
    k=nst[0]
    body.append(f"s_memrealtime s[{46+2*k}:{47+2*k}]\ns_waitcnt vmcnt(0)\ns_memrealtime s[100:101]\ns_memtime s[98:99]\ns_waitcnt lgkmcnt(0)")
    body.append("s_mov_b32 s42, 0x10000000\ns_mov_b32 s43, 0x20000\ns_lshl_b32 s3, s2, 2\ns_add_u32 s3, s3, s28\ns_lshl_b32 s3, s3, 7\nv_mov_b32 v0, 0")
    for i,r in enumerate([46+2*x for x in range(k+1)]+[100,96,98]): body.append(f"v_mov_b32 v1, s{r}\nbuffer_store_dword v1, v0, s[40:43], s3 offen offset:{4*i}")
body.append("s_cmp_eq_u64 s[38:39], 0\ns_cbranch_scc1 L_end")
def slow():
    X=[]; A=X.append; nop="s_nop 7\ns_nop 1"
    A("s_waitcnt vmcnt(0) lgkmcnt(0)\ns_barrier\ns_mul_i32 s46, s28, 40960\ns_lshl_b32 s47, s28, 11")
    A(f"s_sub_u32 s48, s46, {VWIN}\nv_subrev_u32 v{vDV}, s47, v{vDV}\nv_add_u32 v{vDK}, 0x1000, v{vQ}")
    for n in range(4): A(f"v_add_u32 v{vV+n}, s48, v{vV+n}")
    A("s_mov_b32 s44, 0\nL_sj:\ns_lshl_b32 s32, s44, 12\ns_add_u32 s32, s32, s31")
    for ks in range(4): A(f"buffer_load_dwordx4 a[{aQ+4*ks}:{aQ+4*ks+3}], v{vQ}, s[12:15], s32 offen offset:{64*ks}")
    def kq():
        for f in range(8): A(f"global_load_dwordx4 a[{4*f}:{4*f+3}], v{vQ if f<4 else vDK}, s[24:25] offset:{64*(f&3)}")
    def qkm():
        for f in range(8):
            d=R("v",SB+4*(f>>2),4); A(mfma(d,R("a",4*f,4),R("a",aQ+4*(f&3),4),d if f&3 else "0").t)
        A(nop)
    adv="s_add_u32 s24, s24, 8192\ns_addc_u32 s25, s25, 0\ns_add_u32 s45, s45, 1\ns_cmp_lt_u32 s45, 16"
    A(f"v_mov_b32 v{TM}, 0xff800000\ns_mov_b64 s[24:25], s[20:21]\ns_mov_b32 s45, 0\nL_s1:")
    kq(); A("s_waitcnt vmcnt(0)"); qkm()
    for i in range(4): A(f"v_max3_f32 v{TM}, v{TM}, v{SB+2*i}, v{SB+2*i+1}")
    A(adv+"\ns_cbranch_scc1 L_s1")
    for p in ("32","16"): A(f"v_mov_b32 v{TM2}, v{TM}\ns_nop 1\nv_permlane{p}_swap_b32 v{TM}, v{TM2}\ns_nop 1\nv_max_f32 v{TM}, v{TM2}, v{TM}")
    A(f"v_mul_f32 v{TM}, s37, v{TM}")
    for i in range(32): A(f"v_mov_b32 v{OB+i}, 0")
    for i in range(4): A(f"v_accvgpr_write_b32 a{aL+i}, 0")
    A("s_mov_b64 s[24:25], s[20:21]\ns_mov_b64 s[26:27], s[22:23]\ns_mov_b32 s45, 0\nL_s2:")
    kq()
    for bi in range(8):
        A(f"s_add_u32 m0, s46, {bi*VB-(bi&3)*1024}\ns_nop 0\nglobal_load_lds_dwordx4 v{vDV}, s[26:27] offset:{(bi&3)*1024}")
        if bi&3==3: A("s_add_u32 s26, s26, 4096\ns_addc_u32 s27, s27, 0")
    A("s_waitcnt vmcnt(0)")
    for db in range(8):
        for h in range(2): A(f"ds_read_b64_tr_b16 a[{aV+4*db+2*h}:{aV+4*db+2*h+1}], v{vV+(db>>1)} offset:{h*4*VB+8*(db&1)}")
    qkm()
    for e in range(8): A(f"v_fma_f32 v{SB+e}, v{SB+e}, s34, v{TM}")
    for e in range(8): A(f"v_exp_f32 v{SB+e}, v{SB+e}")
    A("s_nop 0")
    for c in range(4): A(f"v_cvt_pk_bf16_f32 v{PB+c}, v{SB+2*c}, v{SB+2*c+1}")
    A("s_waitcnt lgkmcnt(0)\ns_nop 1")
    for db in range(8): A(mfma(R("v",OB+4*db,4),R("a",aV+4*db,4),R("v",PB,4),R("v",OB+4*db,4)).t)
    A(mfma(R("a",aL,4),R("a",aONE,4),R("v",PB,4),R("a",aL,4)).t)
    A(nop+"\n"+adv+"\ns_cbranch_scc1 L_s2")
    A(f"v_accvgpr_read_b32 v{RL}, a{aL}\nv_rcp_f32 v{RR}, v{RL}\ns_nop 0")
    for i in range(32): A(f"v_mul_f32 v{OB+i}, v{RR}, v{OB+i}")
    for i in range(16): A(f"v_cvt_pk_bf16_f32 v{STG+i}, v{OB+2*i}, v{OB+2*i+1}")
    for n in range(4): A(f"buffer_store_dwordx4 v[{STG+4*n}:{STG+4*n+3}], v{vQ}, s[16:19], s32 offen offset:{64*n}")
    A("s_waitcnt vmcnt(0)\ns_add_u32 s44, s44, 1\ns_cmp_lt_u32 s44, 8\ns_cbranch_scc1 L_sj")
    return X
body+=slow(); body.append("L_end:")
hdr=open("standalone__gqa_softmax__near_ridge.s.ref").read().split("; Override")[0]
txt=hdr+f"""; @launch grid=(256,1,1) block=(256,1,1) lds=163840
; Generated by a hand-written scheduler script. One workgroup per (batch, q head), one wave per SIMD.
; S^T = K Q^T and O^T = V^T P^T with 16x16x32 bf16 MFMA; row sums by an MFMA with a ones operand.
; Softmax shift = max over the block's first 32 keys; a row sum outside the safe range sends the wave to the
; exact path at the end (true row max, then the same computation), which rewrites its rows.
.amdgcn_target "amdgcn-amd-amdhsa--gfx950"
.text
.globl {KN}
.p2align 8
.type {KN},@function
{KN}:
"""+"\n".join(body)+f"""
s_endpgm
.section .rodata,"a"
.p2align 6
.amdhsa_kernel {KN}
  .amdhsa_next_free_vgpr 512
  .amdhsa_next_free_sgpr 102
  .amdhsa_accum_offset 256
  .amdhsa_group_segment_fixed_size 0
  .amdhsa_kernarg_size 48
  .amdhsa_user_sgpr_count 2
  .amdhsa_user_sgpr_kernarg_segment_ptr 1
  .amdhsa_system_sgpr_workgroup_id_x 1
.end_amdhsa_kernel
"""
open(sys.argv[1],"w").write(txt)
from collections import Counter
print(f"NS={NS} gaps={NG} over={over} idle={idle} nops={nn} est_cyc={NG*16+over*4} forced={len(forced)} proloads={sum(i.k=='vmem' for i in proloads)}",dict(Counter(i.k for i in L)))
```

```python
import sys, json, struct
from asmlib import *
CFG=dict(start=[0,4,8,12,16,20,24,28], mode="pre", vpad=8, gdma=1, lookK=260, lookV=260, lookQ=300, prew=200, stamps=0,
         vearly=[6,5,4,3,2,1,0,5,4,3], thr=0x4e800000, nslow=0, dslead=8, npro=150, force_slow=0, pf=0, st='_', ql='_')
for a in sys.argv[2:]:
    k,v=a.split("="); CFG[k]=json.loads(v) if v[0] in "[0123456789-" else v
C=type("C",(),CFG)
KN="standalone__gqa_softmax__near_ridge_kernel"
ST=C.st.replace('_',' '); QM=C.ql.replace('_',' '); START=C.start; NS=START[-1]+16; PRE=C.mode=="pre"
VB=1024+C.vpad; VS=8*VB; VWIN=98304
def vslot(i): return 163840-(i+1)*VS
vK=1; vV=5; vDK=9; vDV=11; vQ=12; PT=(13,14,15,93); STG=16; LAND=32; NEGM=48; SB=64; PB=80; TM=88; TM2=89; RL=90; RR=91; OB=96
aK=0; aV=64; aQ=128; aL=208; aONE=228
CSC=struct.unpack("<I",struct.pack("<f",1.4426950408889634*128**-0.5))[0]
def O(j): return OB+32*(j%5)
def land(j): return {1:O(4),2:O(4)+16}.get(j,LAND)
units=[(t,j) for t in range(NS) for j in range(8) if START[j]<=t<START[j]+16]
nU=len(units); assert nU==128
first={}; last={}; ufirst={}; ulast={}
for u,(t,j) in enumerate(units):
    first.setdefault(t,u); last[t]=u; ufirst.setdefault(j,u); ulast[j]=u
M=[]; qk={}; pv={}; s0={}
for u in range(nU+2):
    s0[u]=len(M)
    if u<nU:
        t,j=units[u]; qk[u]=[]
        for kb in range(2):
            for ks in range(4):
                d=R("v",SB+8*(u&1)+4*kb,4)
                c=d if ks else (R("v",NEGM+4*(j%4),4) if PRE and u!=ufirst[j] else "0")
                qk[u].append(len(M)); M.append(mfma(d,R("a",aK+32*(t&1)+16*kb+4*ks,4),R("a",aQ+16*(j%5)+4*ks,4),c))
    if u>=2:
        x=u-2; t,j=units[x]; pv[x]=[]; p=R("v",PB+4*(x&1),4); f=x==ufirst[j]
        for db in range(8):
            d=R("v",O(j)+4*db,4)
            pv[x].append(len(M)); M.append(mfma(d,R("a",aV+32*(t&1)+4*db,4),p,"0" if f else d))
        d=R("a",aL+4*(j%5),4)
        pv[x].append(len(M)); M.append(mfma(d,R("a",aONE,4),p,"0" if f else d))
NG=len(M); s0[nU+2]=NG; TAIL=NG+400
B={t:qk[first[t]][0] for t in range(NS)}; B[0]=-1
class T:
    n=0
    def __init__(s,ins,cost,rel,pd,hd,deps=(),cls=1):
        s.ins=ins if isinstance(ins,list) else [ins]; s.cost=cost; s.rel=rel; s.pd=min(pd,hd); s.hd=hd; s.deps=list(deps); s.cls=cls
        s.soft=0; s.gap=None; s.id=T.n; T.n+=1; tasks.append(s)
tasks=[]
def chain(lst,rel,p0,p1,hd,deps=()):
    prev=None; out=[]
    for i,(ins,cost) in enumerate(lst):
        l=ins if isinstance(ins,list) else [ins]; cls=0 if any(x.k in("vmem","ds") for x in l) else 1
        d=list(deps) if prev is None else [(prev,1 if (cls==0 or prev.ins[-1].k=="trans" or l[0].k=="perm") else 0)]
        prev=T(ins,cost,rel,int(p0+(p1-p0)*i/max(1,len(lst))),hd,d,cls); out.append(prev)
    return out
def maxchain(S,nm):
    v=lambda i:f"v{S+i}"; m=f"v{TM}"; m2=f"v{TM2}"
    L=[(valu("v_max3_f32",m,v(0),v(1),v(2)),1),(valu("v_max3_f32",m,m,v(3),v(4)),1),(valu("v_max3_f32",m,m,v(5),v(6)),1),
       (valu("v_max_f32",m,v(7),m),1),(valu("v_mov_b32",m2,m),1),(valu("v_permlane32_swap_b32",m,m2),2),(valu("v_max_f32",m,m2,m),1),
       (valu("v_mov_b32",m2,m),1),(valu("v_permlane16_swap_b32",m,m2),2),(valu("v_max_f32",m,m2,m),1)]
    L.append((valu("v_sub_f32",f"v{nm}","0",m),1) if PRE else (valu("v_mul_f32",f"v{nm}","s37",m),1))
    return L
for u,(t,j) in enumerate(units):
    S=SB+8*(u&1); P=PB+4*(u&1); nm=NEGM+4*(j%4); a=s0[u+1]; n=s0[u+2]-a
    hdc=[min(qk[u+2][4*(c>>1)]-1 if u+2<nU else TAIL, pv[u][0]-2) for c in range(4)]
    dep0=[]
    if u==ufirst[j]:
        r=qk[u][7]+3; ch=chain(maxchain(S,nm),r,r,r+6,hdc[0]-4); dep0=[(ch[-1],0)]
        for x in ch: x.soft=3
        if PRE:
            nu=[x for x in range(u+1,nU) if units[x][1]==j][0]
            for i in range(1,4): T(valu("v_mov_b32",f"v{nm+i}",f"v{nm}"),1,r,r+10,max(qk[nu][0]-2,r-3),dep0).soft=3
            for x in ch: x.hd=min(x.hd,max(qk[nu][0]-2,r-3)); x.pd=min(x.pd,x.hd)
    pe=None; pf=None; ex=[]
    for e in range(8):
        rel=qk[u][4*(e>>2)+3]+4; pd=a+(2*e+1)*n//17; hd=hdc[e>>1]-1; d=[]
        if not PRE: f=valu("v_fma_f32",f"v{S+e}",f"v{S+e}","s34",f"v{nm}")
        elif u==ufirst[j]: f=valu("v_add_f32",f"v{S+e}",f"v{nm}",f"v{S+e}")
        else: f=None
        if f: pf=T(f,1,rel,pd-1,hd,dep0+([(pf,0)] if pf else [])); d.append((pf,0)); pf.soft=4
        pe=T(valu("v_exp_f32",f"v{S+e}",f"v{S+e}"),2,rel,pd,hd,d+([(pe,0)] if pe else [])); ex.append(pe); pe.soft=4
    for c in range(4):
        T(valu("v_cvt_pk_bf16_f32",f"v{P+c}",f"v{S+2*c}",f"v{S+2*c+1}"),1,pv[u-2][8] if u>=2 else 0,a+(4*c+4)*n//17,hdc[c],[(ex[2*c+1],1)])
bar={t:dict(vm=set(),ds=set(),need=False) for t in range(-1,NS)}
def kread(t,f):
    kt=t%16; d=aK+32*(t&1)+4*f
    return Ins(f"ds_read_b128 {R('a',d,4)}, v{vK+(f&3)} offset:{(kt&7)*8192+(f>>2)*4096}","ds",[f"v{vK+(f&3)}"],regs("a",d,4),tag=f"rK{t}")
KR={}; prevk=None
for t in range(1,NS):
    KR[t]=[]
    if t<16: bar[t-1]["vm"].add(f"K{t}"); bar[t-1]["need"]=True
    tog=[]
    if t%8==0: tog=[T(valu("v_xor_b32",f"v{vK+i}","0x10000",f"v{vK+i}"),1,0,0,qk[first[t]][0]-C.dslead-1,[(prevk,0)]) for i in range(4)]
    for f in range(8):
        rel=max(qk[last[t-2]][f] if t>=2 else 0, B[t-1]+1 if t<16 else 0); hd=max(rel,qk[first[t]][f]-C.dslead)
        prevk=T(kread(t,f),1,rel,hd-4,hd,([(prevk,0)] if prevk else [])+[(x,1) for x in tog],0); KR[t].append(prevk)
Vx={}; VR={}; prevv=None; vs={}
ring=0
for s in range(NS):
    Vx[s]=max(x for x in range(NS) if x==0 or pv[first[s]][0]-B[x]>=22)
    bar[Vx[s]]["vm"].add(f"V{s}"); bar[Vx[s]]["need"]=True
    if s<len(C.vearly): vs[s]=C.vearly[s]
    elif s>=35 and NS>35: vs[s]=[6,5,4,3,vs[32],vs[33],vs[34]][(s-35)%7]
    else: vs[s]=2-ring%3; ring+=1
    VR[s]=[]
    for db in range(8):
        for h in range(2):
            d=aV+32*(s&1)+4*db+2*h; off=vslot(vs[s])-VWIN+h*4*VB+8*(db&1); assert 0<=off<65536
            ins=Ins(f"ds_read_b64_tr_b16 {R('a',d,2)}, v{vV+(db>>1)} offset:{off}","ds",[f"v{vV+(db>>1)}"],regs("a",d,2),tag=f"rV{s}")
            rel=max(pv[last[s-2]][db] if s>=2 else 0,B[Vx[s]]+1); hd=max(rel,pv[first[s]][db]-C.dslead)
            prevv=T(ins,1,rel,hd-8,hd,[(prevv,0)] if prevv else [],0); VR[s].append(prevv)
occ=[]
for t in range(16):
    lt=max(x for x in range(NS) if x%16==t)
    occ.append((B[t-1] if t else -2,f"K{t}",t*8192,t*8192+8192,max(x.hd for x in KR[lt]) if lt else 0,f"rK{lt}"))
for s in range(NS): occ.append((B[Vx[s]]+0.5,f"V{s}",vslot(vs[s]),vslot(vs[s])+VS,max(x.hd for x in VR[s]),f"rV{s}"))
def dma(name,h):
    i=int(name[1:]); L=[]
    if name[0]=="K": kt=i; sp,sb,m0,va,off=24,20,f"s29, {kt*8192+h*4096}",vDK+h,0
    else: kt=i%16; sp,sb,m0,va,off=26,22,f"s30, {vslot(vs[i])+h*C.vpad}",vDV,1024*h
    L.append(salu(f"s_add_u32 m0, {m0}",m0=1))
    if h==0: L+= [salu(f"s_add_u32 s{sp}, s{sb}, {kt*8192}"),salu(f"s_addc_u32 s{sp+1}, s{sb+1}, 0")]
    L.append(Ins(f"global_load_lds_dwordx4 v{va}, s[{sp}:{sp+1}] offset:{off}","vmem",[f"v{va}"],[],dma=1,tag=name))
    return L
def qload(j,ks):
    d=(R("v",land(j)+4*ks,4) if PRE else R("a",aQ+16*(j%5)+4*ks,4))
    L=[salu(f"s_add_u32 s32, s31, {j*4096}")] if ks==0 else []
    return L+[Ins(f"buffer_load_dwordx4 {d}, v{vQ}, s[12:15], s32 offen offset:{64*ks}{QM}","vmem",[f"v{vQ}"],opregs(d))]
def prescale(j):
    L=[]
    for i in range(16):
        x=f"v{land(j)+i}"; a,b=f"v{PT[2*(i&1)]}",f"v{PT[2*(i&1)+1]}"
        L+=[valu("v_lshlrev_b32",a,"16",x),valu("v_and_b32",b,"s35",x),valu("v_mul_f32",a,"s34",a),valu("v_mul_f32",b,"s34",b),
            valu("v_cvt_pk_bf16_f32",x,a,b),valu("v_accvgpr_write_b32",f"a{aQ+16*(j%5)+i}",x)]
    return L
loads=[]
for o in occ:
    fr=-1
    for p in occ:
        if p[0]<o[0] and p[2]<o[3] and o[2]<p[3]:
            y=min(x for x in range(NS) if B[x]>=p[4]+4); bar[y]["ds"].add(p[5]); bar[y]["need"]=True; fr=max(fr,B[y])
    assert fr<0 or fr<o[0]-20,(o,fr)
    loads.append((o[0],fr+1 if fr>=0 else -10**6,C.lookK if o[1][0]=="K" else C.lookV,[dma(o[1],h) for h in range(2)],o[1]))
pw={}
for j in range(8):
    e=qk[ufirst[j]][0]-2
    pw[j]=(max(e-C.prew,(pw[j-1][1]+ (e-pw[j-1][1])//3) if j else -3),e) if PRE else (e,e)
    if j==0: pw[0]=(-3,-3)
    rel=-10**6
    if PRE and j>=3: rel=pw[j-1 if j>3 else 0][1]+1
    if not PRE and j>=5: rel=qk[ulast[j-5]][7]
    loads.append((pw[j][0],rel,C.lookQ,[qload(j,ks) for ks in range(4)],f"Q{j}"))
loads.sort(key=lambda x:x[0])
proloads=[]; QL={}; prev=None; inpro=True
for need,rel,look,il,key in loads:
    if inpro and rel<0 and need<=C.npro: proloads+=[i for l in il for i in l]; continue
    inpro=False
    for l in il:
        r=max(rel,int(need)-look,0); prev=T(l,2,r,r,max(r,int(need)-1),[(prev,0)] if prev else [],0)
    QL[key]=prev
PS={}
for j in range(1,8):
    if PRE:
        rel=max(pw[j][0],qk[ulast[j-5]][7] if j>=5 else 0)
        PS[j]=chain([(i,1) for i in prescale(j)],rel,rel,pw[j][1],pw[j][1],([(QL[f"Q{j}"],1)] if f"Q{j}" in QL else [])+([(PS[j-1][-1],0)] if j>1 else []))
def norm(j):
    o=O(j); L=[(valu("v_accvgpr_read_b32",f"v{RL}",f"a{aL+4*(j%5)}"),1),
       ([Ins(f"v_cmp_ngt_f32 vcc, s36, v{RL}","valu",[f"v{RL}"],[]),salu("s_or_b64 s[38:39], s[38:39], vcc")],1),(valu("v_rcp_f32",f"v{RR}",f"v{RL}"),2)]
    for n in range(4):
        L+=[(valu("v_mul_f32",f"v{o+8*n+i}",f"v{RR}",f"v{o+8*n+i}"),1) for i in range(8)]
        L+=[(valu("v_cvt_pk_bf16_f32",f"v{STG+4*n+i}",f"v{o+8*n+2*i}",f"v{o+8*n+2*i+1}"),1) for i in range(4)]
        d=regs("v",STG+4*n,4)
        L.append((([salu(f"s_add_u32 s33, s31, {j*4096}")] if n==0 else [])+[Ins(f"buffer_store_dwordx4 {R('v',STG+4*n,4)}, v{vQ}, s[16:19], s33 offen offset:{64*n}{ST}","vmem",d+[f"v{vQ}"],[],store=1,data=set(d))],2))
    return L
pn=None
for j in range(8):
    rel=pv[ulast[j]][8]+4; hd=TAIL
    if j+5<8: hd=pv[ufirst[j+5]][0]-3
    if j+1<8: hd=min(hd,max(pv[ulast[j+1]][8]+3,rel+30))
    pn=chain(norm(j),rel,rel,min(hd,rel+150),hd,[(pn[-1],0)] if pn else [])
for t in range(1,NS):
    if bar[t]["need"]: T(Ins("s_barrier","bar",vm_tags=bar[t]["vm"],ds_tags=bar[t]["ds"]),2,B[t],B[t],B[t],[],-1)
gaps=[[] for _ in range(TAIL+1)]; used=[0]*(TAIL+1); forced=set()
def place(x,g,fo=False):
    for d,dist in x.deps:
        if d.gap is None: assert fo; place(d,g,True)
        if d.gap==g and x.cls<d.cls: forced.add(g)
    assert x.rel-x.soft<=g,(x.ins[0].t,x.rel,g)
    x.gap=g; gaps[g].append(x); used[g]+=x.cost
pend=sorted(tasks,key=lambda x:(x.rel,x.id)); act=[]; pi=0
for g in range(TAIL+1):
    while pi<len(pend) and min(pend[pi].rel,pend[pi].hd)<=g: act.append(pend[pi]); pi+=1
    for x in sorted([x for x in tasks if x.gap is None and x.hd<=g],key=lambda x:(x.cls>=0,x.id)):
        if x.gap is None: place(x,g,True)
    while used[g]<2:
        act=[x for x in act if x.gap is None]
        rd=sorted([x for x in act if x.rel<=g and all(d.gap is not None and d.gap+dist<=g for d,dist in x.deps)],key=lambda x:(x.pd,x.id))
        rd=[x for x in rd if x.cost<=2-used[g]]
        if not rd: break
        x=rd[0]
        if used[g]==0 and x.cost==1:
            more=any(y.cost==1 for y in rd[1:]) or any(y.cost==1 and y.rel<=g and any(d is x and dist==0 for d,dist in y.deps) and all(d is x or (d.gap is not None and d.gap+dist<=g) for d,dist in y.deps) for y in act)
            two=[y for y in rd if y.cost==2]
            if not more and two and x.hd>g+1: x=two[0]
        place(x,g)
assert all(x.gap is not None for x in tasks)
over=sum(max(0,used[g]-2) for g in range(NG)); idle=sum(max(0,2-used[g]) for g in range(NG))
L=[]
def S_(txt):
    for l in txt.strip().split("\n"): L.append(salu(l.strip()))
def V_(op,d,*s,**m): L.append(valu(op,d,*s,**m))
nst=[0]
def stamp():
    if C.stamps and nst[0]<24:
        L.append(Ins(f"s_memrealtime s[{46+2*nst[0]}:{47+2*nst[0]}]","salu")); L.append(Ins("s_waitcnt lgkmcnt(0)","wait")); nst[0]+=1
S_("s_cmp_ge_u32 s2, 256\ns_cbranch_scc1 L_end\ns_load_dwordx4 s[4:7], s[0:1], 0\ns_load_dwordx4 s[8:11], s[0:1], 16")
if C.stamps: S_("s_memtime s[96:97]\ns_load_dwordx2 s[40:41], s[0:1], 40"); stamp()
V_("v_lshrrev_b32","v13","6","v0"); V_("v_and_b32","v14","15","v0"); V_("v_bfe_u32","v15","v0","4","2")
L.append(Ins("v_readfirstlane_b32 s28, v13","valu",["v13"],[],rfl=1,wsgpr=1))
V_("v_lshlrev_b32","v88","8","v14"); V_("v_lshl_add_u32",f"v{vQ}","v15","4","v88")
S_("""s_and_b32 s3, s2, 7
s_lshr_b32 s42, s2, 3
s_lshl_b32 s3, s3, 5
s_add_u32 s3, s3, s42
s_lshr_b32 s42, s3, 2
s_lshl_b32 s42, s42, 17
s_lshl_b32 s31, s3, 17
s_lshl_b32 s43, s28, 15
s_add_u32 s31, s31, s43
s_lshl_b32 s29, s28, 10""")
S_(f"s_mul_i32 s30, s28, {2*VB}\ns_mov_b32 s14, 0x2000000\ns_mov_b32 s15, 0x20000\ns_mov_b32 s18, 0x2000000\ns_mov_b32 s19, 0x20000")
V_("v_lshl_add_u32","v89","v13","2","v15"); V_("v_xor_b32","v90","v14","v89"); V_("v_lshlrev_b32","v89","8","v89")
V_("v_lshl_add_u32",f"v{vDK}","v90","4","v89"); V_("v_add_u32",f"v{vDK+1}","0x1000",f"v{vDK}")
V_("v_lshlrev_b32","v89","2","v15"); V_("v_xor_b32","v89","v14","v89"); V_("v_lshlrev_b32","v89","4","v89")
V_("v_lshl_add_u32","v89","v15","8","v89"); V_("v_lshl_add_u32",f"v{vDV}","v13","11","v89")
L.append(Ins("s_waitcnt lgkmcnt(0)","wait"))
S_("""s_mov_b32 s12, s4
s_mov_b32 s13, s5
s_add_u32 s20, s6, s42
s_addc_u32 s21, s7, 0
s_add_u32 s22, s8, s42
s_addc_u32 s23, s9, 0""")
nv=0
for i in proloads:
    L.append(i); nv+=i.k=="vmem"
    if C.pf and i.k=="vmem" and nv==C.pf:
        S_("s_getpc_b64 s[44:45]\nL_pc:")
        V_("v_lshlrev_b32","v92","7","v0"); V_("v_add_u32","v94","0x8000","v92"); V_("v_min_u32","v94","L_end-L_pc","v94")
        V_("v_mov_b32","v93","s45"); V_("v_mov_b32","v95","s45")
        for r in (92,94):
            L.append(Ins(f"v_add_co_u32 v{r}, vcc, s44, v{r}\ns_nop 1\nv_addc_co_u32 v{r+1}, vcc, 0, v{r+1}, vcc","valu",[],[]))
            L.append(Ins(f"global_load_dword v{STG+r-92}, v[{r}:{r+1}], off","vmem",[],[f"v{STG+r-92}"]))
S_(f"s_mov_b32 s16, s10\ns_mov_b32 s17, s11\ns_mov_b32 s34, {CSC:#x}\ns_mov_b32 s35, 0xffff0000\ns_mov_b32 s36, {C.thr:#x}\ns_mov_b32 s37, {CSC|0x80000000:#x}\ns_mov_b64 s[38:39], {-1 if C.force_slow else 0}")
for ks in range(4):
    V_("v_add_u32","v89",str(4*ks),"v15"); V_("v_xor_b32","v89","v14","v89"); V_("v_lshl_add_u32",f"v{vK+ks}","v89","4","v88")
V_("v_bfe_u32","v89","v0","2","2"); V_("v_and_b32","v90","3","v0"); V_("v_mul_u32_u24","v91",str(VB),"v15")
V_("v_lshl_add_u32","v91","v89","8","v91"); V_("v_lshl_add_u32","v91","v90","4","v91"); V_("v_add_u32","v91",hex(VWIN),"v91")
for n in range(4):
    V_("v_xor_b32","v90",str(n),"v89"); V_("v_lshl_add_u32",f"v{vV+n}","v90","6","v91")
V_("v_mov_b32","v89","0x3f803f80")
for i in range(4): V_("v_accvgpr_write_b32",f"a{aONE+i}","v89")
ps=prescale(0) if PRE else []
L+=ps[:72]
stamp()
L.append(Ins("s_barrier","bar",vm_tags={"K0"},ds_tags=set()))
L+=[kread(0,f) for f in range(8)]
L+=ps[72:]
L.append(Ins("s_barrier","bar",vm_tags=bar[0]["vm"],ds_tags=set()))
stamp()
stg={qk[first[t]][0] for t in range(NS) if t%2==0 and t>0}
for g in range(TAIL+1):
    if g in stg: stamp()
    if g<NG: L.append(M[g])
    xs=gaps[g] if g in forced or g>=NG else sorted(gaps[g],key=lambda x:x.cls)
    post=[]
    for x in xs: L+=x.ins
L=waits(L)
L,nn=hazards(L)
body=[i.t for i in L]
if C.stamps:
    k=nst[0]
    body.append(f"s_memrealtime s[{46+2*k}:{47+2*k}]\ns_waitcnt vmcnt(0)\ns_memrealtime s[100:101]\ns_memtime s[98:99]\ns_waitcnt lgkmcnt(0)")
    body.append("s_mov_b32 s42, 0x10000000\ns_mov_b32 s43, 0x20000\ns_lshl_b32 s3, s2, 2\ns_add_u32 s3, s3, s28\ns_lshl_b32 s3, s3, 7\nv_mov_b32 v0, 0")
    for i,r in enumerate([46+2*x for x in range(k+1)]+[100,96,98]): body.append(f"v_mov_b32 v1, s{r}\nbuffer_store_dword v1, v0, s[40:43], s3 offen offset:{4*i}")
body.append("s_cmp_eq_u64 s[38:39], 0\ns_cbranch_scc1 L_end")
def slow():
    X=[]; A=X.append; nop="s_nop 7\ns_nop 1"
    A("s_waitcnt vmcnt(0) lgkmcnt(0)\ns_barrier\ns_mul_i32 s46, s28, 40960\ns_lshl_b32 s47, s28, 11")
    A(f"s_sub_u32 s48, s46, {VWIN}\nv_subrev_u32 v{vDV}, s47, v{vDV}\nv_add_u32 v{vDK}, 0x1000, v{vQ}")
    for n in range(4): A(f"v_add_u32 v{vV+n}, s48, v{vV+n}")
    A("s_mov_b32 s44, 0\nL_sj:\ns_lshl_b32 s32, s44, 12\ns_add_u32 s32, s32, s31")
    for ks in range(4): A(f"buffer_load_dwordx4 a[{aQ+4*ks}:{aQ+4*ks+3}], v{vQ}, s[12:15], s32 offen offset:{64*ks}")
    def kq():
        for f in range(8): A(f"global_load_dwordx4 a[{4*f}:{4*f+3}], v{vQ if f<4 else vDK}, s[24:25] offset:{64*(f&3)}")
    def qkm():
        for f in range(8):
            d=R("v",SB+4*(f>>2),4); A(mfma(d,R("a",4*f,4),R("a",aQ+4*(f&3),4),d if f&3 else "0").t)
        A(nop)
    adv="s_add_u32 s24, s24, 8192\ns_addc_u32 s25, s25, 0\ns_add_u32 s45, s45, 1\ns_cmp_lt_u32 s45, 16"
    A(f"v_mov_b32 v{TM}, 0xff800000\ns_mov_b64 s[24:25], s[20:21]\ns_mov_b32 s45, 0\nL_s1:")
    kq(); A("s_waitcnt vmcnt(0)"); qkm()
    for i in range(4): A(f"v_max3_f32 v{TM}, v{TM}, v{SB+2*i}, v{SB+2*i+1}")
    A(adv+"\ns_cbranch_scc1 L_s1")
    for p in ("32","16"): A(f"v_mov_b32 v{TM2}, v{TM}\ns_nop 1\nv_permlane{p}_swap_b32 v{TM}, v{TM2}\ns_nop 1\nv_max_f32 v{TM}, v{TM2}, v{TM}")
    A(f"v_mul_f32 v{TM}, s37, v{TM}")
    for i in range(32): A(f"v_mov_b32 v{OB+i}, 0")
    for i in range(4): A(f"v_accvgpr_write_b32 a{aL+i}, 0")
    A("s_mov_b64 s[24:25], s[20:21]\ns_mov_b64 s[26:27], s[22:23]\ns_mov_b32 s45, 0\nL_s2:")
    kq()
    for bi in range(8):
        A(f"s_add_u32 m0, s46, {bi*VB-(bi&3)*1024}\ns_nop 0\nglobal_load_lds_dwordx4 v{vDV}, s[26:27] offset:{(bi&3)*1024}")
        if bi&3==3: A("s_add_u32 s26, s26, 4096\ns_addc_u32 s27, s27, 0")
    A("s_waitcnt vmcnt(0)")
    for db in range(8):
        for h in range(2): A(f"ds_read_b64_tr_b16 a[{aV+4*db+2*h}:{aV+4*db+2*h+1}], v{vV+(db>>1)} offset:{h*4*VB+8*(db&1)}")
    qkm()
    for e in range(8): A(f"v_fma_f32 v{SB+e}, v{SB+e}, s34, v{TM}")
    for e in range(8): A(f"v_exp_f32 v{SB+e}, v{SB+e}")
    A("s_nop 0")
    for c in range(4): A(f"v_cvt_pk_bf16_f32 v{PB+c}, v{SB+2*c}, v{SB+2*c+1}")
    A("s_waitcnt lgkmcnt(0)\ns_nop 1")
    for db in range(8): A(mfma(R("v",OB+4*db,4),R("a",aV+4*db,4),R("v",PB,4),R("v",OB+4*db,4)).t)
    A(mfma(R("a",aL,4),R("a",aONE,4),R("v",PB,4),R("a",aL,4)).t)
    A(nop+"\n"+adv+"\ns_cbranch_scc1 L_s2")
    A(f"v_accvgpr_read_b32 v{RL}, a{aL}\nv_rcp_f32 v{RR}, v{RL}\ns_nop 0")
    for i in range(32): A(f"v_mul_f32 v{OB+i}, v{RR}, v{OB+i}")
    for i in range(16): A(f"v_cvt_pk_bf16_f32 v{STG+i}, v{OB+2*i}, v{OB+2*i+1}")
    for n in range(4): A(f"buffer_store_dwordx4 v[{STG+4*n}:{STG+4*n+3}], v{vQ}, s[16:19], s32 offen offset:{64*n}")
    A("s_waitcnt vmcnt(0)\ns_add_u32 s44, s44, 1\ns_cmp_lt_u32 s44, 8\ns_cbranch_scc1 L_sj")
    return X
body+=slow(); body.append("L_end:")
hdr=open("standalone__gqa_softmax__near_ridge.s.ref").read().split("; Override")[0]
txt=hdr+f"""; @launch grid=(256,1,1) block=(256,1,1) lds=163840
; Generated by a hand-written scheduler script. One workgroup per (batch, q head), one wave per SIMD.
; S^T = K Q^T and O^T = V^T P^T with 16x16x32 bf16 MFMA; row sums by an MFMA with a ones operand.
; Softmax shift = max over the block's first 32 keys; a row sum outside the safe range sends the wave to the
; exact path at the end (true row max, then the same computation), which rewrites its rows.
.amdgcn_target "amdgcn-amd-amdhsa--gfx950"
.text
.globl {KN}
.p2align 8
.type {KN},@function
{KN}:
"""+"\n".join(body)+f"""
s_endpgm
.section .rodata,"a"
.p2align 6
.amdhsa_kernel {KN}
  .amdhsa_next_free_vgpr 512
  .amdhsa_next_free_sgpr 102
  .amdhsa_accum_offset 256
  .amdhsa_group_segment_fixed_size 0
  .amdhsa_kernarg_size 48
  .amdhsa_user_sgpr_count 2
  .amdhsa_user_sgpr_kernarg_segment_ptr 1
  .amdhsa_system_sgpr_workgroup_id_x 1
.end_amdhsa_kernel
"""
open(sys.argv[1],"w").write(txt)
from collections import Counter
print(f"NS={NS} gaps={NG} over={over} idle={idle} nops={nn} est_cyc={NG*16+over*4} forced={len(forced)} proloads={sum(i.k=='vmem' for i in proloads)}",dict(Counter(i.k for i in L)))
```

```python
import sys, json, struct
from asmlib import *
CFG=dict(start=[0,4,8,12,16,20,24,28], mode="pre", vpad=8, gdma=1, lookK=260, lookV=260, lookQ=300, prew=200, stamps=0,
         vearly=[6,5,4,3,2,1,0,5,4,3], thr=0x4e800000, nslow=0, dslead=8, npro=60, force_slow=0, rq=1, rk=0, stev=2, empty=0, pf=6, st='_sc0_sc1', ql='_', kl='_', vl='_', vl2='_')
for a in sys.argv[2:]:
    k,v=a.split("="); CFG[k]=json.loads(v) if v[0] in "[0123456789-" else v
C=type("C",(),CFG)
KN="standalone__gqa_softmax__near_ridge_kernel"
ST=C.st.replace('_',' '); QM=C.ql.replace('_',' '); START=C.start; NS=START[-1]+16; PRE=C.mode=="pre"
VB=1024+C.vpad; VS=8*VB; VWIN=98304
def vslot(i): return 163840-(i+1)*VS
vK=1; vV=5; vDK=9; vDV=11; vQ=12; PT=(13,14,15,93); STG=16; LAND=32; NEGM=48; SB=64; PB=80; TM=88; TM2=89; RL=90; RR=91; OB=96
aK=0; aV=64; aQ=128; aL=208; aONE=228
CSC=struct.unpack("<I",struct.pack("<f",1.4426950408889634*128**-0.5))[0]
def O(j): return OB+32*(j%5)
def land(j): return {1:O(4),2:O(4)+16}.get(j,LAND)
units=[(t,j) for t in range(NS) for j in range(8) if START[j]<=t<START[j]+16]
nU=len(units); assert nU==128
first={}; last={}; ufirst={}; ulast={}
for u,(t,j) in enumerate(units):
    first.setdefault(t,u); last[t]=u; ufirst.setdefault(j,u); ulast[j]=u
M=[]; qk={}; pv={}; s0={}
for u in range(nU+2):
    s0[u]=len(M)
    if u<nU:
        t,j=units[u]; qk[u]=[]
        for kb in range(2):
            for ks in range(4):
                d=R("v",SB+8*(u&1)+4*kb,4)
                c=d if ks else (R("v",NEGM+4*(j%4),4) if PRE and u!=ufirst[j] else "0")
                qk[u].append(len(M)); M.append(mfma(d,R("a",aK+32*(t&1)+16*kb+4*ks,4),R("a",aQ+16*(j%5)+4*ks,4),c))
    if u>=2:
        x=u-2; t,j=units[x]; pv[x]=[]; p=R("v",PB+4*(x&1),4); f=x==ufirst[j]
        for db in range(8):
            d=R("v",O(j)+4*db,4)
            pv[x].append(len(M)); M.append(mfma(d,R("a",aV+32*(t&1)+4*db,4),p,"0" if f else d))
        d=R("a",aL+4*(j%5),4)
        pv[x].append(len(M)); M.append(mfma(d,R("a",aONE,4),p,"0" if f else d))
NG=len(M); s0[nU+2]=NG; TAIL=NG+400
B={t:qk[first[t]][0] for t in range(NS)}; B[0]=-1
class T:
    n=0
    def __init__(s,ins,cost,rel,pd,hd,deps=(),cls=1):
        s.ins=ins if isinstance(ins,list) else [ins]; s.cost=cost; s.rel=rel; s.pd=min(pd,hd); s.hd=hd; s.deps=list(deps); s.cls=cls
        s.soft=0; s.gap=None; s.id=T.n; T.n+=1; tasks.append(s)
tasks=[]
def chain(lst,rel,p0,p1,hd,deps=()):
    prev=None; out=[]
    for i,(ins,cost) in enumerate(lst):
        l=ins if isinstance(ins,list) else [ins]; cls=0 if any(x.k in("vmem","ds") for x in l) else 1
        d=list(deps) if prev is None else [(prev,1 if (cls==0 or prev.ins[-1].k=="trans" or l[0].k=="perm") else 0)]
        prev=T(ins,cost,rel,int(p0+(p1-p0)*i/max(1,len(lst))),hd,d,cls); out.append(prev)
    return out
def maxchain(S,nm):
    v=lambda i:f"v{S+i}"; m=f"v{TM}"; m2=f"v{TM2}"
    L=[(valu("v_max3_f32",m,v(0),v(1),v(2)),1),(valu("v_max3_f32",m,m,v(3),v(4)),1),(valu("v_max3_f32",m,m,v(5),v(6)),1),
       (valu("v_max_f32",m,v(7),m),1),(valu("v_mov_b32",m2,m),1),(valu("v_permlane32_swap_b32",m,m2),2),(valu("v_max_f32",m,m2,m),1),
       (valu("v_mov_b32",m2,m),1),(valu("v_permlane16_swap_b32",m,m2),2),(valu("v_max_f32",m,m2,m),1)]
    L.append((valu("v_sub_f32",f"v{nm}","0",m),1) if PRE else (valu("v_mul_f32",f"v{nm}","s37",m),1))
    return L
for u,(t,j) in enumerate(units):
    S=SB+8*(u&1); P=PB+4*(u&1); nm=NEGM+4*(j%4); a=s0[u+1]; n=s0[u+2]-a
    hdc=[min(qk[u+2][4*(c>>1)]-1 if u+2<nU else TAIL, pv[u][0]-2) for c in range(4)]
    dep0=[]
    if u==ufirst[j]:
        r=qk[u][7]+3; ch=chain(maxchain(S,nm),r,r,r+6,hdc[0]-4); dep0=[(ch[-1],0)]
        for x in ch: x.soft=3
        if PRE:
            nu=[x for x in range(u+1,nU) if units[x][1]==j][0]
            for i in range(1,4): T(valu("v_mov_b32",f"v{nm+i}",f"v{nm}"),1,r,r+10,max(qk[nu][0]-2,r-3),dep0).soft=3
            for x in ch: x.hd=min(x.hd,max(qk[nu][0]-2,r-3)); x.pd=min(x.pd,x.hd)
    pe=None; pf=None; ex=[]
    for e in range(8):
        rel=qk[u][4*(e>>2)+3]+4; pd=a+(2*e+1)*n//17; hd=hdc[e>>1]-1; d=[]
        if not PRE: f=valu("v_fma_f32",f"v{S+e}",f"v{S+e}","s34",f"v{nm}")
        elif u==ufirst[j]: f=valu("v_add_f32",f"v{S+e}",f"v{nm}",f"v{S+e}")
        else: f=None
        if f: pf=T(f,1,rel,pd-1,hd,dep0+([(pf,0)] if pf else [])); d.append((pf,0)); pf.soft=4
        pe=T(valu("v_exp_f32",f"v{S+e}",f"v{S+e}"),2,rel,pd,hd,d+([(pe,0)] if pe else [])); ex.append(pe); pe.soft=4
    for c in range(4):
        T(valu("v_cvt_pk_bf16_f32",f"v{P+c}",f"v{S+2*c}",f"v{S+2*c+1}"),1,pv[u-2][8] if u>=2 else 0,a+(4*c+4)*n//17,hdc[c],[(ex[2*c+1],1)])
bar={t:dict(vm=set(),ds=set(),need=False) for t in range(-1,NS)}
def kread(t,f):
    kt=t%16; d=aK+32*(t&1)+4*f
    return Ins(f"ds_read_b128 {R('a',d,4)}, v{vK+(f&3)} offset:{(kt&7)*8192+(f>>2)*4096}","ds",[f"v{vK+(f&3)}"],regs("a",d,4),tag=f"rK{t}")
KR={}; prevk=None
for t in range(1,NS):
    KR[t]=[]
    if t<16: bar[t-1]["vm"].add(f"K{t}"); bar[t-1]["need"]=True
    tog=[]
    if t%8==0: tog=[T(valu("v_xor_b32",f"v{vK+i}","0x10000",f"v{vK+i}"),1,0,0,qk[first[t]][0]-C.dslead-1,[(prevk,0)]) for i in range(4)]
    for f in range(8):
        rel=max(qk[last[t-2]][f] if t>=2 else 0, B[t-1]+1 if t<16 else 0); hd=max(rel,qk[first[t]][f]-C.dslead)
        prevk=T(kread(t,f),1,rel,hd-4,hd,([(prevk,0)] if prevk else [])+[(x,1) for x in tog],0); KR[t].append(prevk)
Vx={}; VR={}; prevv=None; vs={}
ring=0
for s in range(NS):
    Vx[s]=max(x for x in range(NS) if x==0 or pv[first[s]][0]-B[x]>=22)
    bar[Vx[s]]["vm"].add(f"V{s}"); bar[Vx[s]]["need"]=True
    if s<len(C.vearly): vs[s]=C.vearly[s]
    elif s>=35 and NS>35: vs[s]=[6,5,4,3,vs[32],vs[33],vs[34]][(s-35)%7]
    else: vs[s]=2-ring%3; ring+=1
    VR[s]=[]
    for db in range(8):
        for h in range(2):
            d=aV+32*(s&1)+4*db+2*h; off=vslot(vs[s])-VWIN+h*4*VB+8*(db&1); assert 0<=off<65536
            ins=Ins(f"ds_read_b64_tr_b16 {R('a',d,2)}, v{vV+(db>>1)} offset:{off}","ds",[f"v{vV+(db>>1)}"],regs("a",d,2),tag=f"rV{s}")
            rel=max(pv[last[s-2]][db] if s>=2 else 0,B[Vx[s]]+1); hd=max(rel,pv[first[s]][db]-C.dslead)
            prevv=T(ins,1,rel,hd-8,hd,[(prevv,0)] if prevv else [],0); VR[s].append(prevv)
occ=[]
for t in range(16):
    lt=max(x for x in range(NS) if x%16==t)
    occ.append((B[t-1] if t else -2,f"K{t}",t*8192,t*8192+8192,max(x.hd for x in KR[lt]) if lt else 0,f"rK{lt}"))
for s in range(NS): occ.append((B[Vx[s]]+0.5,f"V{s}",vslot(vs[s]),vslot(vs[s])+VS,max(x.hd for x in VR[s]),f"rV{s}"))
def dma(name,h):
    i=int(name[1:]); L=[]
    if name[0]=="K": kt=i; sp,sb,m0,va,off=24,20,f"s29, {kt*8192+h*4096}",vDK+h,0
    else: kt=i%16; sp,sb,m0,va,off=26,22,f"s30, {vslot(vs[i])+h*C.vpad}",vDV,1024*h
    L.append(salu(f"s_add_u32 m0, {m0}",m0=1))
    if h==0: L+= [salu(f"s_add_u32 s94, s93, {kt*8192}"),salu("s_and_b32 s94, s94, 0x1ffff"),salu(f"s_add_u32 s{sp}, s{sb}, s94"),salu(f"s_addc_u32 s{sp+1}, s{sb+1}, 0")]
    L.append(Ins(f"global_load_lds_dwordx4 v{va}, s[{sp}:{sp+1}] offset:{off}"+(C.kl if name[0]=="K" else C.vl if i<16 else C.vl2).replace("_"," "),"vmem",[f"v{va}"],[],dma=1,tag=name))
    return L
def qoff(r,j): return [salu(f's_add_u32 s{r}, s92, {j*16384}'),salu(f's_and_b32 s{r}, s{r}, 0x1ffff'),salu(f's_add_u32 s{r}, s{r}, s31')]
def qload(j,ks):
    d=(R("v",land(j)+4*ks,4) if PRE else R("a",aQ+16*(j%5)+4*ks,4))
    L=qoff(32,j) if ks==0 else []
    return L+[Ins(f"buffer_load_dwordx4 {d}, v{vQ}, s[12:15], s32 offen offset:{64*ks}{QM}","vmem",[f"v{vQ}"],opregs(d))]
def prescale(j):
    L=[]
    for i in range(16):
        x=f"v{land(j)+i}"; a,b=f"v{PT[2*(i&1)]}",f"v{PT[2*(i&1)+1]}"
        L+=[valu("v_lshlrev_b32",a,"16",x),valu("v_and_b32",b,"s35",x),valu("v_mul_f32",a,"s34",a),valu("v_mul_f32",b,"s34",b),
            valu("v_cvt_pk_bf16_f32",x,a,b),valu("v_accvgpr_write_b32",f"a{aQ+16*(j%5)+i}",x)]
    return L
loads=[]
for o in occ:
    fr=-1
    for p in occ:
        if p[0]<o[0] and p[2]<o[3] and o[2]<p[3]:
            y=min(x for x in range(NS) if B[x]>=p[4]+4); bar[y]["ds"].add(p[5]); bar[y]["need"]=True; fr=max(fr,B[y])
    assert fr<0 or fr<o[0]-20,(o,fr)
    loads.append((o[0],fr+1 if fr>=0 else -10**6,C.lookK if o[1][0]=="K" else C.lookV,[dma(o[1],h) for h in range(2)],o[1]))
pw={}
for j in range(8):
    e=qk[ufirst[j]][0]-2
    pw[j]=(max(e-C.prew,(pw[j-1][1]+ (e-pw[j-1][1])//3) if j else -3),e) if PRE else (e,e)
    if j==0: pw[0]=(-3,-3)
    rel=-10**6
    if PRE and j>=3: rel=pw[j-1 if j>3 else 0][1]+1
    if not PRE and j>=5: rel=qk[ulast[j-5]][7]
    loads.append((pw[j][0],rel,C.lookQ,[qload(j,ks) for ks in range(4)],f"Q{j}"))
loads.sort(key=lambda x:x[0])
proloads=[]; QL={}; prev=None; inpro=True
for need,rel,look,il,key in loads:
    if inpro and rel<0 and need<=C.npro: proloads+=[i for l in il for i in l]; continue
    inpro=False
    for l in il:
        r=max(rel,int(need)-look,0); prev=T(l,2,r,r,max(r,int(need)-1),[(prev,0)] if prev else [],0)
    QL[key]=prev
PS={}
for j in range(1,8):
    if PRE:
        rel=max(pw[j][0],qk[ulast[j-5]][7] if j>=5 else 0)
        PS[j]=chain([(i,1) for i in prescale(j)],rel,rel,pw[j][1],pw[j][1],([(QL[f"Q{j}"],1)] if f"Q{j}" in QL else [])+([(PS[j-1][-1],0)] if j>1 else []))
def norm(j):
    o=O(j); L=[(valu("v_accvgpr_read_b32",f"v{RL}",f"a{aL+4*(j%5)}"),1),
       ([Ins(f"v_cmp_ngt_f32 vcc, s36, v{RL}","valu",[f"v{RL}"],[]),salu("s_or_b64 s[38:39], s[38:39], vcc")],1),(valu("v_rcp_f32",f"v{RR}",f"v{RL}"),2)]
    for n in range(4):
        L+=[(valu("v_mul_f32",f"v{o+8*n+i}",f"v{RR}",f"v{o+8*n+i}"),1) for i in range(8)]
        L+=[(valu("v_cvt_pk_bf16_f32",f"v{STG+4*n+i}",f"v{o+8*n+2*i}",f"v{o+8*n+2*i+1}"),1) for i in range(4)]
        d=regs("v",STG+4*n,4)
        L.append(((qoff(33,j) if n==0 else [])+[Ins(f"buffer_store_dwordx4 {R('v',STG+4*n,4)}, v{vQ}, s[16:19], s33 offen offset:{64*n}{ST}","vmem",d+[f"v{vQ}"],[],store=1,data=set(d))],2))
    return L
pn=None
for j in range(8):
    rel=pv[ulast[j]][8]+4; hd=TAIL
    if j+5<8: hd=pv[ufirst[j+5]][0]-3
    if j+1<8: hd=min(hd,max(pv[ulast[j+1]][8]+3,rel+30))
    pn=chain(norm(j),rel,rel,min(hd,rel+150),hd,[(pn[-1],0)] if pn else [])
for t in range(1,NS):
    if bar[t]["need"]: T(Ins("s_barrier","bar",vm_tags=bar[t]["vm"],ds_tags=bar[t]["ds"]),2,B[t],B[t],B[t],[],-1)
gaps=[[] for _ in range(TAIL+1)]; used=[0]*(TAIL+1); forced=set()
def place(x,g,fo=False):
    for d,dist in x.deps:
        if d.gap is None: assert fo; place(d,g,True)
        if d.gap==g and x.cls<d.cls: forced.add(g)
    assert x.rel-x.soft<=g,(x.ins[0].t,x.rel,g)
    x.gap=g; gaps[g].append(x); used[g]+=x.cost
pend=sorted(tasks,key=lambda x:(x.rel,x.id)); act=[]; pi=0
for g in range(TAIL+1):
    while pi<len(pend) and min(pend[pi].rel,pend[pi].hd)<=g: act.append(pend[pi]); pi+=1
    for x in sorted([x for x in tasks if x.gap is None and x.hd<=g],key=lambda x:(x.cls>=0,x.id)):
        if x.gap is None: place(x,g,True)
    while used[g]<2:
        act=[x for x in act if x.gap is None]
        rd=sorted([x for x in act if x.rel<=g and all(d.gap is not None and d.gap+dist<=g for d,dist in x.deps)],key=lambda x:(x.pd,x.id))
        rd=[x for x in rd if x.cost<=2-used[g]]
        if not rd: break
        x=rd[0]
        if used[g]==0 and x.cost==1:
            more=any(y.cost==1 for y in rd[1:]) or any(y.cost==1 and y.rel<=g and any(d is x and dist==0 for d,dist in y.deps) and all(d is x or (d.gap is not None and d.gap+dist<=g) for d,dist in y.deps) for y in act)
            two=[y for y in rd if y.cost==2]
            if not more and two and x.hd>g+1: x=two[0]
        place(x,g)
assert all(x.gap is not None for x in tasks)
over=sum(max(0,used[g]-2) for g in range(NG)); idle=sum(max(0,2-used[g]) for g in range(NG))
L=[]
def S_(txt):
    for l in txt.strip().split("\n"): L.append(salu(l.strip()))
def V_(op,d,*s,**m): L.append(valu(op,d,*s,**m))
nst=[0]
def stamp():
    if C.stamps and nst[0]<22:
        L.append(Ins(f"s_memrealtime s[{46+2*nst[0]}:{47+2*nst[0]}]","salu")); L.append(Ins("s_waitcnt lgkmcnt(0)","wait")); nst[0]+=1
S_(f"s_cmp_ge_u32 s2, {0 if C.empty else 256}\ns_cbranch_scc1 L_end\ns_load_dwordx4 s[4:7], s[0:1], 0\ns_load_dwordx4 s[8:11], s[0:1], 16")
if C.stamps: S_("s_memtime s[96:97]\ns_load_dwordx2 s[40:41], s[0:1], 40"); stamp()
V_("v_lshrrev_b32","v13","6","v0"); V_("v_and_b32","v14","15","v0"); V_("v_bfe_u32","v15","v0","4","2")
L.append(Ins("v_readfirstlane_b32 s28, v13","valu",["v13"],[],rfl=1,wsgpr=1))
V_("v_lshlrev_b32","v88","8","v14"); V_("v_lshl_add_u32",f"v{vQ}","v15","4","v88")
S_("""s_and_b32 s3, s2, 7
s_lshr_b32 s42, s2, 3
s_lshl_b32 s3, s3, 5
s_add_u32 s3, s3, s42
s_lshr_b32 s42, s3, 2
s_lshl_b32 s42, s42, 17
s_lshl_b32 s31, s3, 17
s_lshl_b32 s43, s28, 12
s_add_u32 s31, s31, s43
s_lshl_b32 s29, s28, 10""")
S_(f"s_mul_i32 s92, s3, {C.rq*16384}\ns_mul_i32 s93, s3, {C.rk*8192}")
S_(f"s_mul_i32 s30, s28, {2*VB}\ns_mov_b32 s14, 0x2000000\ns_mov_b32 s15, 0x20000\ns_mov_b32 s18, 0x2000000\ns_mov_b32 s19, 0x20000")
V_("v_lshl_add_u32","v89","v13","2","v15"); V_("v_xor_b32","v90","v14","v89"); V_("v_lshlrev_b32","v89","8","v89")
V_("v_lshl_add_u32",f"v{vDK}","v90","4","v89"); V_("v_add_u32",f"v{vDK+1}","0x1000",f"v{vDK}")
V_("v_lshlrev_b32","v89","2","v15"); V_("v_xor_b32","v89","v14","v89"); V_("v_lshlrev_b32","v89","4","v89")
V_("v_lshl_add_u32","v89","v15","8","v89"); V_("v_lshl_add_u32",f"v{vDV}","v13","11","v89")
L.append(Ins("s_waitcnt lgkmcnt(0)","wait"))
S_("""s_mov_b32 s12, s4
s_mov_b32 s13, s5
s_add_u32 s20, s6, s42
s_addc_u32 s21, s7, 0
s_add_u32 s22, s8, s42
s_addc_u32 s23, s9, 0""")
nv=0
for i in proloads:
    L.append(i); nv+=i.k=="vmem"
    if C.pf and i.k=="vmem" and nv==C.pf:
        S_("s_getpc_b64 s[44:45]\nL_pc:")
        V_("v_lshlrev_b32","v92","7","v0"); V_("v_add_u32","v94","0x8000","v92"); V_("v_min_u32","v94","L_end-L_pc","v94")
        V_("v_mov_b32","v93","s45"); V_("v_mov_b32","v95","s45")
        for r in (92,94):
            L.append(Ins(f"v_add_co_u32 v{r}, vcc, s44, v{r}\ns_nop 1\nv_addc_co_u32 v{r+1}, vcc, 0, v{r+1}, vcc","valu",[],[]))
            L.append(Ins(f"global_load_dword v{STG+r-92}, v[{r}:{r+1}], off","vmem",[],[f"v{STG+r-92}"]))
S_(f"s_mov_b32 s16, s10\ns_mov_b32 s17, s11\ns_mov_b32 s34, {CSC:#x}\ns_mov_b32 s35, 0xffff0000\ns_mov_b32 s36, {C.thr:#x}\ns_mov_b32 s37, {CSC|0x80000000:#x}\ns_mov_b64 s[38:39], {-1 if C.force_slow else 0}")
for ks in range(4):
    V_("v_add_u32","v89",str(4*ks),"v15"); V_("v_xor_b32","v89","v14","v89"); V_("v_lshl_add_u32",f"v{vK+ks}","v89","4","v88")
V_("v_bfe_u32","v89","v0","2","2"); V_("v_and_b32","v90","3","v0"); V_("v_mul_u32_u24","v91",str(VB),"v15")
V_("v_lshl_add_u32","v91","v89","8","v91"); V_("v_lshl_add_u32","v91","v90","4","v91"); V_("v_add_u32","v91",hex(VWIN),"v91")
for n in range(4):
    V_("v_xor_b32","v90",str(n),"v89"); V_("v_lshl_add_u32",f"v{vV+n}","v90","6","v91")
V_("v_mov_b32","v89","0x3f803f80")
for i in range(4): V_("v_accvgpr_write_b32",f"a{aONE+i}","v89")
ps=prescale(0) if PRE else []
L+=ps[:72]
stamp()
L.append(Ins("s_barrier","bar",vm_tags={"K0"},ds_tags=set()))
L+=[kread(0,f) for f in range(8)]
L+=ps[72:]
L.append(Ins("s_barrier","bar",vm_tags=bar[0]["vm"],ds_tags=set()))
stamp()
stg={qk[first[t]][0] for t in range(NS) if t%C.stev==0 and t>0}
for g in range(TAIL+1):
    if g in stg: stamp()
    if g<NG: L.append(M[g])
    xs=gaps[g] if g in forced or g>=NG else sorted(gaps[g],key=lambda x:x.cls)
    post=[]
    for x in xs: L+=x.ins
L=waits(L)
L,nn=hazards(L)
body=[i.t for i in L]
if C.stamps:
    k=nst[0]
    body.append(f"s_memrealtime s[{46+2*k}:{47+2*k}]\ns_waitcnt vmcnt(0)\ns_memrealtime s[100:101]\ns_memtime s[98:99]\ns_waitcnt lgkmcnt(0)")
    body.append("s_mov_b32 s42, 0x10000000\ns_mov_b32 s43, 0x20000\ns_lshl_b32 s3, s2, 2\ns_add_u32 s3, s3, s28\ns_lshl_b32 s3, s3, 7\nv_mov_b32 v0, 0")
    for i,r in enumerate([46+2*x for x in range(k+1)]+[46+2*k]*(22-k)+[100,96,98]): body.append(f"v_mov_b32 v1, s{r}\nbuffer_store_dword v1, v0, s[40:43], s3 offen offset:{4*i}")
body.append("s_cmp_eq_u64 s[38:39], 0\ns_cbranch_scc1 L_end")
def slow():
    X=[]; A=X.append; nop="s_nop 7\ns_nop 1"
    A("s_waitcnt vmcnt(0) lgkmcnt(0)\ns_barrier\ns_mul_i32 s46, s28, 40960\ns_lshl_b32 s47, s28, 11")
    A(f"s_sub_u32 s48, s46, {VWIN}\nv_subrev_u32 v{vDV}, s47, v{vDV}\nv_add_u32 v{vDK}, 0x1000, v{vQ}")
    for n in range(4): A(f"v_add_u32 v{vV+n}, s48, v{vV+n}")
    A("s_mov_b32 s44, 0\nL_sj:\ns_lshl_b32 s32, s44, 14\ns_add_u32 s32, s32, s31")
    for ks in range(4): A(f"buffer_load_dwordx4 a[{aQ+4*ks}:{aQ+4*ks+3}], v{vQ}, s[12:15], s32 offen offset:{64*ks}")
    def kq():
        for f in range(8): A(f"global_load_dwordx4 a[{4*f}:{4*f+3}], v{vQ if f<4 else vDK}, s[24:25] offset:{64*(f&3)}")
    def qkm():
        for f in range(8):
            d=R("v",SB+4*(f>>2),4); A(mfma(d,R("a",4*f,4),R("a",aQ+4*(f&3),4),d if f&3 else "0").t)
        A(nop)
    adv="s_add_u32 s24, s24, 8192\ns_addc_u32 s25, s25, 0\ns_add_u32 s45, s45, 1\ns_cmp_lt_u32 s45, 16"
    A(f"v_mov_b32 v{TM}, 0xff800000\ns_mov_b64 s[24:25], s[20:21]\ns_mov_b32 s45, 0\nL_s1:")
    kq(); A("s_waitcnt vmcnt(0)"); qkm()
    for i in range(4): A(f"v_max3_f32 v{TM}, v{TM}, v{SB+2*i}, v{SB+2*i+1}")
    A(adv+"\ns_cbranch_scc1 L_s1")
    for p in ("32","16"): A(f"v_mov_b32 v{TM2}, v{TM}\ns_nop 1\nv_permlane{p}_swap_b32 v{TM}, v{TM2}\ns_nop 1\nv_max_f32 v{TM}, v{TM2}, v{TM}")
    A(f"v_mul_f32 v{TM}, s37, v{TM}")
    for i in range(32): A(f"v_mov_b32 v{OB+i}, 0")
    for i in range(4): A(f"v_accvgpr_write_b32 a{aL+i}, 0")
    A("s_mov_b64 s[24:25], s[20:21]\ns_mov_b64 s[26:27], s[22:23]\ns_mov_b32 s45, 0\nL_s2:")
    kq()
    for bi in range(8):
        A(f"s_add_u32 m0, s46, {bi*VB-(bi&3)*1024}\ns_nop 0\nglobal_load_lds_dwordx4 v{vDV}, s[26:27] offset:{(bi&3)*1024}")
        if bi&3==3: A("s_add_u32 s26, s26, 4096\ns_addc_u32 s27, s27, 0")
    A("s_waitcnt vmcnt(0)")
    for db in range(8):
        for h in range(2): A(f"ds_read_b64_tr_b16 a[{aV+4*db+2*h}:{aV+4*db+2*h+1}], v{vV+(db>>1)} offset:{h*4*VB+8*(db&1)}")
    qkm()
    for e in range(8): A(f"v_fma_f32 v{SB+e}, v{SB+e}, s34, v{TM}")
    for e in range(8): A(f"v_exp_f32 v{SB+e}, v{SB+e}")
    A("s_nop 0")
    for c in range(4): A(f"v_cvt_pk_bf16_f32 v{PB+c}, v{SB+2*c}, v{SB+2*c+1}")
    A("s_waitcnt lgkmcnt(0)\ns_nop 1")
    for db in range(8): A(mfma(R("v",OB+4*db,4),R("a",aV+4*db,4),R("v",PB,4),R("v",OB+4*db,4)).t)
    A(mfma(R("a",aL,4),R("a",aONE,4),R("v",PB,4),R("a",aL,4)).t)
    A(nop+"\n"+adv+"\ns_cbranch_scc1 L_s2")
    A(f"v_accvgpr_read_b32 v{RL}, a{aL}\nv_rcp_f32 v{RR}, v{RL}\ns_nop 0")
    for i in range(32): A(f"v_mul_f32 v{OB+i}, v{RR}, v{OB+i}")
    for i in range(16): A(f"v_cvt_pk_bf16_f32 v{STG+i}, v{OB+2*i}, v{OB+2*i+1}")
    for n in range(4): A(f"buffer_store_dwordx4 v[{STG+4*n}:{STG+4*n+3}], v{vQ}, s[16:19], s32 offen offset:{64*n}")
    A("s_waitcnt vmcnt(0)\ns_add_u32 s44, s44, 1\ns_cmp_lt_u32 s44, 8\ns_cbranch_scc1 L_sj")
    return X
body+=slow(); body.append("L_end:")
hdr=open("standalone__gqa_softmax__near_ridge.s.ref").read().split("; Override")[0]
txt=hdr+f"""; @launch grid=(256,1,1) block=(256,1,1) lds=163840
; Generated by a hand-written scheduler script. One workgroup per (batch, q head), one wave per SIMD.
; S^T = K Q^T and O^T = V^T P^T with 16x16x32 bf16 MFMA; row sums by an MFMA with a ones operand.
; Softmax shift = max over the block's first 32 keys; a row sum outside the safe range sends the wave to the
; exact path at the end (true row max, then the same computation), which rewrites its rows.
.amdgcn_target "amdgcn-amd-amdhsa--gfx950"
.text
.globl {KN}
.p2align 8
.type {KN},@function
{KN}:
"""+"\n".join(body)+f"""
s_endpgm
.section .rodata,"a"
.p2align 6
.amdhsa_kernel {KN}
  .amdhsa_next_free_vgpr 512
  .amdhsa_next_free_sgpr 102
  .amdhsa_accum_offset 256
  .amdhsa_group_segment_fixed_size 0
  .amdhsa_kernarg_size 48
  .amdhsa_user_sgpr_count 2
  .amdhsa_user_sgpr_kernarg_segment_ptr 1
  .amdhsa_system_sgpr_workgroup_id_x 1
.end_amdhsa_kernel
"""
open(sys.argv[1],"w").write(txt)
from collections import Counter
print(f"NS={NS} gaps={NG} over={over} idle={idle} nops={nn} est_cyc={NG*16+over*4} forced={len(forced)} proloads={sum(i.k=='vmem' for i in proloads)}",dict(Counter(i.k for i in L)))
```

```python
import sys, json, struct
from asmlib import *
CFG=dict(start=[0,4,8,12,16,20,24,28], mode="pre", vpad=8, gdma=1, lookK=260, lookV=260, lookQ=300, prew=200, stamps=0,
         vearly=[6,5,4,3,2,1,0,5,4,3], thr=0x4e800000, nslow=0, dslead=8, npro=60, force_slow=0, diag=-1, rq=1, rk=0, stev=2, empty=0, pf=6, st='_sc0_sc1', ql='_', kl='_', vl='_', vl2='_')
for a in sys.argv[2:]:
    k,v=a.split("="); CFG[k]=json.loads(v) if v[0] in "[0123456789-" else v
C=type("C",(),CFG)
KN="standalone__gqa_softmax__near_ridge_kernel"
ST=C.st.replace('_',' '); QM=C.ql.replace('_',' '); START=C.start; NS=START[-1]+16; PRE=C.mode=="pre"
VB=1024+C.vpad; VS=8*VB; VWIN=98304
def vslot(i): return 163840-(i+1)*VS
vK=1; vV=5; vDK=9; vDV=11; vQ=12; PT=(13,14,15,93); STG=16; LAND=32; NEGM=48; SB=64; PB=80; TM=88; TM2=89; RL=90; RR=91; OB=96
aK=0; aV=64; aQ=128; aL=208; aONE=228
CSC=struct.unpack("<I",struct.pack("<f",1.4426950408889634*128**-0.5))[0]
def O(j): return OB+32*(j%5)
def land(j): return {1:O(4),2:O(4)+16}.get(j,LAND)
units=[(t,j) for t in range(NS) for j in range(8) if START[j]<=t<START[j]+16]
nU=len(units); assert nU==128
first={}; last={}; ufirst={}; ulast={}
for u,(t,j) in enumerate(units):
    first.setdefault(t,u); last[t]=u; ufirst.setdefault(j,u); ulast[j]=u
M=[]; qk={}; pv={}; s0={}
for u in range(nU+2):
    s0[u]=len(M)
    if u<nU:
        t,j=units[u]; qk[u]=[]
        for kb in range(2):
            for ks in range(4):
                d=R("v",SB+8*(u&1)+4*kb,4)
                c=d if ks else (R("v",NEGM+4*(j%4),4) if PRE and u!=ufirst[j] else "0")
                qk[u].append(len(M)); M.append(mfma(d,R("a",aK+32*(t&1)+16*kb+4*ks,4),R("a",aQ+16*(j%5)+4*ks,4),c))
    if u>=2:
        x=u-2; t,j=units[x]; pv[x]=[]; p=R("v",PB+4*(x&1),4); f=x==ufirst[j]
        for db in range(8):
            d=R("v",O(j)+4*db,4)
            pv[x].append(len(M)); M.append(mfma(d,R("a",aV+32*(t&1)+4*db,4),p,"0" if f else d))
        d=R("a",aL+4*(j%5),4)
        pv[x].append(len(M)); M.append(mfma(d,R("a",aONE,4),p,"0" if f else d))
NG=len(M); s0[nU+2]=NG; TAIL=NG+400
B={t:qk[first[t]][0] for t in range(NS)}; B[0]=-1
class T:
    n=0
    def __init__(s,ins,cost,rel,pd,hd,deps=(),cls=1):
        s.ins=ins if isinstance(ins,list) else [ins]; s.cost=cost; s.rel=rel; s.pd=min(pd,hd); s.hd=hd; s.deps=list(deps); s.cls=cls
        s.soft=0; s.gap=None; s.id=T.n; T.n+=1; tasks.append(s)
tasks=[]
def chain(lst,rel,p0,p1,hd,deps=()):
    prev=None; out=[]
    for i,(ins,cost) in enumerate(lst):
        l=ins if isinstance(ins,list) else [ins]; cls=0 if any(x.k in("vmem","ds") for x in l) else 1
        d=list(deps) if prev is None else [(prev,1 if (cls==0 or prev.ins[-1].k=="trans" or l[0].k=="perm") else 0)]
        prev=T(ins,cost,rel,int(p0+(p1-p0)*i/max(1,len(lst))),hd,d,cls); out.append(prev)
    return out
def maxchain(S,nm):
    v=lambda i:f"v{S+i}"; m=f"v{TM}"; m2=f"v{TM2}"
    L=[(valu("v_max3_f32",m,v(0),v(1),v(2)),1),(valu("v_max3_f32",m,m,v(3),v(4)),1),(valu("v_max3_f32",m,m,v(5),v(6)),1),
       (valu("v_max_f32",m,v(7),m),1),(valu("v_mov_b32",m2,m),1),(valu("v_permlane32_swap_b32",m,m2),2),(valu("v_max_f32",m,m2,m),1),
       (valu("v_mov_b32",m2,m),1),(valu("v_permlane16_swap_b32",m,m2),2),(valu("v_max_f32",m,m2,m),1)]
    L.append((valu("v_sub_f32",f"v{nm}","0",m),1) if PRE else (valu("v_mul_f32",f"v{nm}","s37",m),1))
    return L
for u,(t,j) in enumerate(units):
    S=SB+8*(u&1); P=PB+4*(u&1); nm=NEGM+4*(j%4); a=s0[u+1]; n=s0[u+2]-a
    hdc=[min(qk[u+2][4*(c>>1)]-1 if u+2<nU else TAIL, pv[u][0]-2) for c in range(4)]
    dep0=[]
    if u==ufirst[j]:
        r=qk[u][7]+3; ch=chain(maxchain(S,nm),r,r,r+6,hdc[0]-4); dep0=[(ch[-1],0)]
        for x in ch: x.soft=3
        if PRE:
            nu=[x for x in range(u+1,nU) if units[x][1]==j][0]
            for i in range(1,4): T(valu("v_mov_b32",f"v{nm+i}",f"v{nm}"),1,r,r+10,max(qk[nu][0]-2,r-3),dep0).soft=3
            for x in ch: x.hd=min(x.hd,max(qk[nu][0]-2,r-3)); x.pd=min(x.pd,x.hd)
    pe=None; pf=None; ex=[]
    for e in range(8):
        rel=qk[u][4*(e>>2)+3]+4; pd=a+(2*e+1)*n//17; hd=hdc[e>>1]-1; d=[]
        if not PRE: f=valu("v_fma_f32",f"v{S+e}",f"v{S+e}","s34",f"v{nm}")
        elif u==ufirst[j]: f=valu("v_add_f32",f"v{S+e}",f"v{nm}",f"v{S+e}")
        else: f=None
        if f: pf=T(f,1,rel,pd-1,hd,dep0+([(pf,0)] if pf else [])); d.append((pf,0)); pf.soft=4
        pe=T(valu("v_exp_f32",f"v{S+e}",f"v{S+e}"),2,rel,pd,hd,d+([(pe,0)] if pe else [])); ex.append(pe); pe.soft=4
    for c in range(4):
        T(valu("v_cvt_pk_bf16_f32",f"v{P+c}",f"v{S+2*c}",f"v{S+2*c+1}"),1,pv[u-2][8] if u>=2 else 0,a+(4*c+4)*n//17,hdc[c],[(ex[2*c+1],1)])
bar={t:dict(vm=set(),ds=set(),need=False) for t in range(-1,NS)}
def kread(t,f):
    kt=t%16; d=aK+32*(t&1)+4*f
    return Ins(f"ds_read_b128 {R('a',d,4)}, v{vK+(f&3)} offset:{(kt&7)*8192+(f>>2)*4096}","ds",[f"v{vK+(f&3)}"],regs("a",d,4),tag=f"rK{t}")
KR={}; prevk=None
for t in range(1,NS):
    KR[t]=[]
    if t<16: bar[t-1]["vm"].add(f"K{t}"); bar[t-1]["need"]=True
    tog=[]
    if t%8==0: tog=[T(valu("v_xor_b32",f"v{vK+i}","0x10000",f"v{vK+i}"),1,0,0,qk[first[t]][0]-C.dslead-1,[(prevk,0)]) for i in range(4)]
    for f in range(8):
        rel=max(qk[last[t-2]][f] if t>=2 else 0, B[t-1]+1 if t<16 else 0); hd=max(rel,qk[first[t]][f]-C.dslead)
        prevk=T(kread(t,f),1,rel,hd-4,hd,([(prevk,0)] if prevk else [])+[(x,1) for x in tog],0); KR[t].append(prevk)
Vx={}; VR={}; prevv=None; vs={}
ring=0
for s in range(NS):
    Vx[s]=max(x for x in range(NS) if x==0 or pv[first[s]][0]-B[x]>=22)
    bar[Vx[s]]["vm"].add(f"V{s}"); bar[Vx[s]]["need"]=True
    if s<len(C.vearly): vs[s]=C.vearly[s]
    elif s>=35 and NS>35: vs[s]=[6,5,4,3,vs[32],vs[33],vs[34]][(s-35)%7]
    else: vs[s]=2-ring%3; ring+=1
    VR[s]=[]
    for db in range(8):
        for h in range(2):
            d=aV+32*(s&1)+4*db+2*h; off=vslot(vs[s])-VWIN+h*4*VB+8*(db&1); assert 0<=off<65536
            ins=Ins(f"ds_read_b64_tr_b16 {R('a',d,2)}, v{vV+(db>>1)} offset:{off}","ds",[f"v{vV+(db>>1)}"],regs("a",d,2),tag=f"rV{s}")
            rel=max(pv[last[s-2]][db] if s>=2 else 0,B[Vx[s]]+1); hd=max(rel,pv[first[s]][db]-C.dslead)
            prevv=T(ins,1,rel,hd-8,hd,[(prevv,0)] if prevv else [],0); VR[s].append(prevv)
occ=[]
for t in range(16):
    lt=max(x for x in range(NS) if x%16==t)
    occ.append((B[t-1] if t else -2,f"K{t}",t*8192,t*8192+8192,max(x.hd for x in KR[lt]) if lt else 0,f"rK{lt}"))
for s in range(NS): occ.append((B[Vx[s]]+0.5,f"V{s}",vslot(vs[s]),vslot(vs[s])+VS,max(x.hd for x in VR[s]),f"rV{s}"))
def dma(name,h):
    i=int(name[1:]); L=[]
    if name[0]=="K": kt=i; sp,sb,m0,va,off=24,20,f"s29, {kt*8192+h*4096}",vDK+h,0
    else: kt=i%16; sp,sb,m0,va,off=26,22,f"s30, {vslot(vs[i])+h*C.vpad}",vDV,1024*h
    L.append(salu(f"s_add_u32 m0, {m0}",m0=1))
    if h==0: L+= [salu(f"s_add_u32 s94, s93, {kt*8192}"),salu("s_and_b32 s94, s94, 0x1ffff"),salu(f"s_add_u32 s{sp}, s{sb}, s94"),salu(f"s_addc_u32 s{sp+1}, s{sb+1}, 0")]
    L.append(Ins(f"global_load_lds_dwordx4 v{va}, s[{sp}:{sp+1}] offset:{off}"+(C.kl if name[0]=="K" else C.vl if i<16 else C.vl2).replace("_"," "),"vmem",[f"v{va}"],[],dma=1,tag=name))
    return L
def qoff(r,j): return [salu(f's_add_u32 s{r}, s92, {j*16384}'),salu(f's_and_b32 s{r}, s{r}, 0x1ffff'),salu(f's_add_u32 s{r}, s{r}, s31')]
def qload(j,ks):
    d=(R("v",land(j)+4*ks,4) if PRE else R("a",aQ+16*(j%5)+4*ks,4))
    L=qoff(32,j) if ks==0 else []
    return L+[Ins(f"buffer_load_dwordx4 {d}, v{vQ}, s[12:15], s32 offen offset:{64*ks}{QM}","vmem",[f"v{vQ}"],opregs(d))]
def prescale(j):
    L=[]
    for i in range(16):
        x=f"v{land(j)+i}"; a,b=f"v{PT[2*(i&1)]}",f"v{PT[2*(i&1)+1]}"
        L+=[valu("v_lshlrev_b32",a,"16",x),valu("v_and_b32",b,"s35",x),valu("v_mul_f32",a,"s34",a),valu("v_mul_f32",b,"s34",b),
            valu("v_cvt_pk_bf16_f32",x,a,b),valu("v_accvgpr_write_b32",f"a{aQ+16*(j%5)+i}",x)]
    return L
loads=[]
for o in occ:
    fr=-1
    for p in occ:
        if p[0]<o[0] and p[2]<o[3] and o[2]<p[3]:
            y=min(x for x in range(NS) if B[x]>=p[4]+4); bar[y]["ds"].add(p[5]); bar[y]["need"]=True; fr=max(fr,B[y])
    assert fr<0 or fr<o[0]-20,(o,fr)
    loads.append((o[0],fr+1 if fr>=0 else -10**6,C.lookK if o[1][0]=="K" else C.lookV,[dma(o[1],h) for h in range(2)],o[1]))
pw={}
for j in range(8):
    e=qk[ufirst[j]][0]-2
    pw[j]=(max(e-C.prew,(pw[j-1][1]+ (e-pw[j-1][1])//3) if j else -3),e) if PRE else (e,e)
    if j==0: pw[0]=(-3,-3)
    rel=-10**6
    if PRE and j>=3: rel=pw[j-1 if j>3 else 0][1]+1
    if not PRE and j>=5: rel=qk[ulast[j-5]][7]
    loads.append((pw[j][0],rel,C.lookQ,[qload(j,ks) for ks in range(4)],f"Q{j}"))
loads.sort(key=lambda x:x[0])
proloads=[]; QL={}; prev=None; inpro=True
for need,rel,look,il,key in loads:
    if inpro and rel<0 and need<=C.npro: proloads+=[i for l in il for i in l]; continue
    inpro=False
    for l in il:
        r=max(rel,int(need)-look,0); prev=T(l,2,r,r,max(r,int(need)-1),[(prev,0)] if prev else [],0)
    QL[key]=prev
PS={}
for j in range(1,8):
    if PRE:
        rel=max(pw[j][0],qk[ulast[j-5]][7] if j>=5 else 0)
        PS[j]=chain([(i,1) for i in prescale(j)],rel,rel,pw[j][1],pw[j][1],([(QL[f"Q{j}"],1)] if f"Q{j}" in QL else [])+([(PS[j-1][-1],0)] if j>1 else []))
def norm(j):
    o=O(j); L=[(valu("v_accvgpr_read_b32",f"v{RL}",f"a{aL+4*(j%5)}"),1),
       ([Ins(f"v_cmp_ngt_f32 vcc, s36, v{RL}","valu",[f"v{RL}"],[]),salu("s_or_b64 s[38:39], s[38:39], vcc")],1),(valu("v_rcp_f32",f"v{RR}",f"v{RL}"),2)]
    for n in range(4):
        L+=[(valu("v_mul_f32",f"v{o+8*n+i}",f"v{RR}",f"v{o+8*n+i}"),1) for i in range(8)]
        L+=[(valu("v_cvt_pk_bf16_f32",f"v{STG+4*n+i}",f"v{o+8*n+2*i}",f"v{o+8*n+2*i+1}"),1) for i in range(4)]
        d=regs("v",STG+4*n,4)
        L.append(((qoff(33,j) if n==0 else [])+[Ins(f"buffer_store_dwordx4 {R('v',STG+4*n,4)}, v{vQ}, s[16:19], s33 offen offset:{64*n}{ST}","vmem",d+[f"v{vQ}"],[],store=1,data=set(d))],2))
    return L
pn=None
for j in range(8):
    rel=pv[ulast[j]][8]+4; hd=TAIL
    if j+5<8: hd=pv[ufirst[j+5]][0]-3
    if j+1<8: hd=min(hd,max(pv[ulast[j+1]][8]+3,rel+30))
    pn=chain(norm(j),rel,rel,min(hd,rel+150),hd,[(pn[-1],0)] if pn else [])
for t in range(1,NS):
    if bar[t]["need"]: T(Ins("s_barrier","bar",vm_tags=bar[t]["vm"],ds_tags=bar[t]["ds"]),2,B[t],B[t],B[t],[],-1)
gaps=[[] for _ in range(TAIL+1)]; used=[0]*(TAIL+1); forced=set()
def place(x,g,fo=False):
    for d,dist in x.deps:
        if d.gap is None: assert fo; place(d,g,True)
        if d.gap==g and x.cls<d.cls: forced.add(g)
    assert x.rel-x.soft<=g,(x.ins[0].t,x.rel,g)
    x.gap=g; gaps[g].append(x); used[g]+=x.cost
pend=sorted(tasks,key=lambda x:(x.rel,x.id)); act=[]; pi=0
for g in range(TAIL+1):
    while pi<len(pend) and min(pend[pi].rel,pend[pi].hd)<=g: act.append(pend[pi]); pi+=1
    for x in sorted([x for x in tasks if x.gap is None and x.hd<=g],key=lambda x:(x.cls>=0,x.id)):
        if x.gap is None: place(x,g,True)
    while used[g]<2:
        act=[x for x in act if x.gap is None]
        rd=sorted([x for x in act if x.rel<=g and all(d.gap is not None and d.gap+dist<=g for d,dist in x.deps)],key=lambda x:(x.pd,x.id))
        rd=[x for x in rd if x.cost<=2-used[g]]
        if not rd: break
        x=rd[0]
        if used[g]==0 and x.cost==1:
            more=any(y.cost==1 for y in rd[1:]) or any(y.cost==1 and y.rel<=g and any(d is x and dist==0 for d,dist in y.deps) and all(d is x or (d.gap is not None and d.gap+dist<=g) for d,dist in y.deps) for y in act)
            two=[y for y in rd if y.cost==2]
            if not more and two and x.hd>g+1: x=two[0]
        place(x,g)
assert all(x.gap is not None for x in tasks)
over=sum(max(0,used[g]-2) for g in range(NG)); idle=sum(max(0,2-used[g]) for g in range(NG))
L=[]
def S_(txt):
    for l in txt.strip().split("\n"): L.append(salu(l.strip()))
def V_(op,d,*s,**m): L.append(valu(op,d,*s,**m))
nst=[0]
nd=[0]
def stamp():
    if C.diag>=0:
        if nd[0]==0: L.append(Ins('s_memrealtime s[46:47]\ns_memtime s[50:51]','salu'))
        if nd[0]==C.diag: L.append(Ins('s_memrealtime s[48:49]','salu')); L.append(Ins('s_waitcnt lgkmcnt(0)','wait'))
        nd[0]+=1
    if C.stamps and nst[0]<22:
        L.append(Ins(f"s_memrealtime s[{46+2*nst[0]}:{47+2*nst[0]}]","salu")); L.append(Ins("s_waitcnt lgkmcnt(0)","wait")); nst[0]+=1
S_(f"s_cmp_ge_u32 s2, {0 if C.empty else 256}\ns_cbranch_scc1 L_end\ns_load_dwordx4 s[4:7], s[0:1], 0\ns_load_dwordx4 s[8:11], s[0:1], 16")
if C.stamps: S_("s_memtime s[96:97]\ns_load_dwordx2 s[40:41], s[0:1], 40")
stamp()
V_("v_lshrrev_b32","v13","6","v0"); V_("v_and_b32","v14","15","v0"); V_("v_bfe_u32","v15","v0","4","2")
L.append(Ins("v_readfirstlane_b32 s28, v13","valu",["v13"],[],rfl=1,wsgpr=1))
V_("v_lshlrev_b32","v88","8","v14"); V_("v_lshl_add_u32",f"v{vQ}","v15","4","v88")
S_("""s_and_b32 s3, s2, 7
s_lshr_b32 s42, s2, 3
s_lshl_b32 s3, s3, 5
s_add_u32 s3, s3, s42
s_lshr_b32 s42, s3, 2
s_lshl_b32 s42, s42, 17
s_lshl_b32 s31, s3, 17
s_lshl_b32 s43, s28, 12
s_add_u32 s31, s31, s43
s_lshl_b32 s29, s28, 10""")
S_(f"s_mul_i32 s92, s3, {C.rq*16384}\ns_mul_i32 s93, s3, {C.rk*8192}")
S_(f"s_mul_i32 s30, s28, {2*VB}\ns_mov_b32 s14, 0x2000000\ns_mov_b32 s15, 0x20000\ns_mov_b32 s18, 0x2000000\ns_mov_b32 s19, 0x20000")
V_("v_lshl_add_u32","v89","v13","2","v15"); V_("v_xor_b32","v90","v14","v89"); V_("v_lshlrev_b32","v89","8","v89")
V_("v_lshl_add_u32",f"v{vDK}","v90","4","v89"); V_("v_add_u32",f"v{vDK+1}","0x1000",f"v{vDK}")
V_("v_lshlrev_b32","v89","2","v15"); V_("v_xor_b32","v89","v14","v89"); V_("v_lshlrev_b32","v89","4","v89")
V_("v_lshl_add_u32","v89","v15","8","v89"); V_("v_lshl_add_u32",f"v{vDV}","v13","11","v89")
L.append(Ins("s_waitcnt lgkmcnt(0)","wait"))
S_("""s_mov_b32 s12, s4
s_mov_b32 s13, s5
s_add_u32 s20, s6, s42
s_addc_u32 s21, s7, 0
s_add_u32 s22, s8, s42
s_addc_u32 s23, s9, 0""")
nv=0
for i in proloads:
    L.append(i); nv+=i.k=="vmem"
    if C.pf and i.k=="vmem" and nv==C.pf:
        S_("s_getpc_b64 s[44:45]\nL_pc:")
        V_("v_lshlrev_b32","v92","7","v0"); V_("v_add_u32","v94","0x8000","v92"); V_("v_min_u32","v94","L_end-L_pc","v94")
        V_("v_mov_b32","v93","s45"); V_("v_mov_b32","v95","s45")
        for r in (92,94):
            L.append(Ins(f"v_add_co_u32 v{r}, vcc, s44, v{r}\ns_nop 1\nv_addc_co_u32 v{r+1}, vcc, 0, v{r+1}, vcc","valu",[],[]))
            L.append(Ins(f"global_load_dword v{STG+r-92}, v[{r}:{r+1}], off","vmem",[],[f"v{STG+r-92}"]))
S_(f"s_mov_b32 s16, s10\ns_mov_b32 s17, s11\ns_mov_b32 s34, {CSC:#x}\ns_mov_b32 s35, 0xffff0000\ns_mov_b32 s36, {C.thr:#x}\ns_mov_b32 s37, {CSC|0x80000000:#x}\ns_mov_b64 s[38:39], {-1 if C.force_slow else 0}")
for ks in range(4):
    V_("v_add_u32","v89",str(4*ks),"v15"); V_("v_xor_b32","v89","v14","v89"); V_("v_lshl_add_u32",f"v{vK+ks}","v89","4","v88")
V_("v_bfe_u32","v89","v0","2","2"); V_("v_and_b32","v90","3","v0"); V_("v_mul_u32_u24","v91",str(VB),"v15")
V_("v_lshl_add_u32","v91","v89","8","v91"); V_("v_lshl_add_u32","v91","v90","4","v91"); V_("v_add_u32","v91",hex(VWIN),"v91")
for n in range(4):
    V_("v_xor_b32","v90",str(n),"v89"); V_("v_lshl_add_u32",f"v{vV+n}","v90","6","v91")
V_("v_mov_b32","v89","0x3f803f80")
for i in range(4): V_("v_accvgpr_write_b32",f"a{aONE+i}","v89")
ps=prescale(0) if PRE else []
L+=ps[:72]
stamp()
L.append(Ins("s_barrier","bar",vm_tags={"K0"},ds_tags=set()))
L+=[kread(0,f) for f in range(8)]
L+=ps[72:]
L.append(Ins("s_barrier","bar",vm_tags=bar[0]["vm"],ds_tags=set()))
stamp()
stg={qk[first[t]][0] for t in range(NS) if t%C.stev==0 and t>0}
for g in range(TAIL+1):
    if g in stg: stamp()
    if g<NG: L.append(M[g])
    xs=gaps[g] if g in forced or g>=NG else sorted(gaps[g],key=lambda x:x.cls)
    post=[]
    for x in xs: L+=x.ins
L=waits(L)
L,nn=hazards(L)
body=[i.t for i in L]
if C.stamps:
    k=nst[0]
    body.append(f"s_memrealtime s[{46+2*k}:{47+2*k}]\ns_waitcnt vmcnt(0)\ns_memrealtime s[100:101]\ns_memtime s[98:99]\ns_waitcnt lgkmcnt(0)")
    body.append("s_mov_b32 s42, 0x10000000\ns_mov_b32 s43, 0x20000\ns_lshl_b32 s3, s2, 2\ns_add_u32 s3, s3, s28\ns_lshl_b32 s3, s3, 7\nv_mov_b32 v0, 0")
    for i,r in enumerate([46+2*x for x in range(k+1)]+[46+2*k]*(22-k)+[100,96,98]): body.append(f"v_mov_b32 v1, s{r}\nbuffer_store_dword v1, v0, s[40:43], s3 offen offset:{4*i}")
if C.diag>=0:
    if C.diag==98: body.append("s_waitcnt vmcnt(0)\ns_memrealtime s[48:49]\ns_waitcnt lgkmcnt(0)")
    if C.diag==99: body.append("s_waitcnt vmcnt(0)\ns_memtime s[48:49]\ns_waitcnt lgkmcnt(0)\ns_sub_u32 s48, s48, s50\ns_lshr_b32 s48, s48, 5\ns_add_u32 s48, s48, s46")
    body.append("s_sub_u32 s48, s48, s46\ns_mul_i32 s48, s48, 4\ns_add_u32 s48, s48, 6000\nL_spin:\ns_memrealtime s[52:53]\ns_waitcnt lgkmcnt(0)\ns_sub_u32 s52, s52, s46\ns_cmp_lt_u32 s52, s48\ns_cbranch_scc1 L_spin")
body.append("s_cmp_eq_u64 s[38:39], 0\ns_cbranch_scc1 L_end")
def slow():
    X=[]; A=X.append; nop="s_nop 7\ns_nop 1"
    A("s_waitcnt vmcnt(0) lgkmcnt(0)\ns_barrier\ns_mul_i32 s46, s28, 40960\ns_lshl_b32 s47, s28, 11")
    A(f"s_sub_u32 s48, s46, {VWIN}\nv_subrev_u32 v{vDV}, s47, v{vDV}\nv_add_u32 v{vDK}, 0x1000, v{vQ}")
    for n in range(4): A(f"v_add_u32 v{vV+n}, s48, v{vV+n}")
    A("s_mov_b32 s44, 0\nL_sj:\ns_lshl_b32 s32, s44, 14\ns_add_u32 s32, s32, s31")
    for ks in range(4): A(f"buffer_load_dwordx4 a[{aQ+4*ks}:{aQ+4*ks+3}], v{vQ}, s[12:15], s32 offen offset:{64*ks}")
    def kq():
        for f in range(8): A(f"global_load_dwordx4 a[{4*f}:{4*f+3}], v{vQ if f<4 else vDK}, s[24:25] offset:{64*(f&3)}")
    def qkm():
        for f in range(8):
            d=R("v",SB+4*(f>>2),4); A(mfma(d,R("a",4*f,4),R("a",aQ+4*(f&3),4),d if f&3 else "0").t)
        A(nop)
    adv="s_add_u32 s24, s24, 8192\ns_addc_u32 s25, s25, 0\ns_add_u32 s45, s45, 1\ns_cmp_lt_u32 s45, 16"
    A(f"v_mov_b32 v{TM}, 0xff800000\ns_mov_b64 s[24:25], s[20:21]\ns_mov_b32 s45, 0\nL_s1:")
    kq(); A("s_waitcnt vmcnt(0)"); qkm()
    for i in range(4): A(f"v_max3_f32 v{TM}, v{TM}, v{SB+2*i}, v{SB+2*i+1}")
    A(adv+"\ns_cbranch_scc1 L_s1")
    for p in ("32","16"): A(f"v_mov_b32 v{TM2}, v{TM}\ns_nop 1\nv_permlane{p}_swap_b32 v{TM}, v{TM2}\ns_nop 1\nv_max_f32 v{TM}, v{TM2}, v{TM}")
    A(f"v_mul_f32 v{TM}, s37, v{TM}")
    for i in range(32): A(f"v_mov_b32 v{OB+i}, 0")
    for i in range(4): A(f"v_accvgpr_write_b32 a{aL+i}, 0")
    A("s_mov_b64 s[24:25], s[20:21]\ns_mov_b64 s[26:27], s[22:23]\ns_mov_b32 s45, 0\nL_s2:")
    kq()
    for bi in range(8):
        A(f"s_add_u32 m0, s46, {bi*VB-(bi&3)*1024}\ns_nop 0\nglobal_load_lds_dwordx4 v{vDV}, s[26:27] offset:{(bi&3)*1024}")
        if bi&3==3: A("s_add_u32 s26, s26, 4096\ns_addc_u32 s27, s27, 0")
    A("s_waitcnt vmcnt(0)")
    for db in range(8):
        for h in range(2): A(f"ds_read_b64_tr_b16 a[{aV+4*db+2*h}:{aV+4*db+2*h+1}], v{vV+(db>>1)} offset:{h*4*VB+8*(db&1)}")
    qkm()
    for e in range(8): A(f"v_fma_f32 v{SB+e}, v{SB+e}, s34, v{TM}")
    for e in range(8): A(f"v_exp_f32 v{SB+e}, v{SB+e}")
    A("s_nop 0")
    for c in range(4): A(f"v_cvt_pk_bf16_f32 v{PB+c}, v{SB+2*c}, v{SB+2*c+1}")
    A("s_waitcnt lgkmcnt(0)\ns_nop 1")
    for db in range(8): A(mfma(R("v",OB+4*db,4),R("a",aV+4*db,4),R("v",PB,4),R("v",OB+4*db,4)).t)
    A(mfma(R("a",aL,4),R("a",aONE,4),R("v",PB,4),R("a",aL,4)).t)
    A(nop+"\n"+adv+"\ns_cbranch_scc1 L_s2")
    A(f"v_accvgpr_read_b32 v{RL}, a{aL}\nv_rcp_f32 v{RR}, v{RL}\ns_nop 0")
    for i in range(32): A(f"v_mul_f32 v{OB+i}, v{RR}, v{OB+i}")
    for i in range(16): A(f"v_cvt_pk_bf16_f32 v{STG+i}, v{OB+2*i}, v{OB+2*i+1}")
    for n in range(4): A(f"buffer_store_dwordx4 v[{STG+4*n}:{STG+4*n+3}], v{vQ}, s[16:19], s32 offen offset:{64*n}")
    A("s_waitcnt vmcnt(0)\ns_add_u32 s44, s44, 1\ns_cmp_lt_u32 s44, 8\ns_cbranch_scc1 L_sj")
    return X
body+=slow(); body.append("L_end:")
hdr=open("standalone__gqa_softmax__near_ridge.s.ref").read().split("; Override")[0]
txt=hdr+f"""; @launch grid=(256,1,1) block=(256,1,1) lds=163840
; Generated by a hand-written scheduler script. One workgroup per (batch, q head), one wave per SIMD.
; S^T = K Q^T and O^T = V^T P^T with 16x16x32 bf16 MFMA; row sums by an MFMA with a ones operand.
; Softmax shift = max over the block's first 32 keys; a row sum outside the safe range sends the wave to the
; exact path at the end (true row max, then the same computation), which rewrites its rows.
.amdgcn_target "amdgcn-amd-amdhsa--gfx950"
.text
.globl {KN}
.p2align 8
.type {KN},@function
{KN}:
"""+"\n".join(body)+f"""
s_endpgm
.section .rodata,"a"
.p2align 6
.amdhsa_kernel {KN}
  .amdhsa_next_free_vgpr 512
  .amdhsa_next_free_sgpr 102
  .amdhsa_accum_offset 256
  .amdhsa_group_segment_fixed_size 0
  .amdhsa_kernarg_size 48
  .amdhsa_user_sgpr_count 2
  .amdhsa_user_sgpr_kernarg_segment_ptr 1
  .amdhsa_system_sgpr_workgroup_id_x 1
.end_amdhsa_kernel
"""
open(sys.argv[1],"w").write(txt)
from collections import Counter
print(f"NS={NS} gaps={NG} over={over} idle={idle} nops={nn} est_cyc={NG*16+over*4} forced={len(forced)} proloads={sum(i.k=='vmem' for i in proloads)}",dict(Counter(i.k for i in L)))
```

```python
import sys, json, struct
from asmlib import *
CFG=dict(start=[0,4,8,12,16,20,24,28], mode="pre", vpad=8, gdma=1, lookK=260, lookV=260, lookQ=300, prew=200, stamps=0,
         vearly=[6,5,4,3,2,1,0,5,4,3], thr=0x4e800000, nslow=0, dslead=8, npro=60, force_slow=0, sync='flag', fd=14, fr=7, nA=10, pfx=[6,16,26], flag0=1, abl='_', cyc=0, diag=-1, rq=1, rk=0, stev=2, empty=0, pf=6, st='_sc0_sc1', ql='_', kl='_', vl='_', vl2='_')
for a in sys.argv[2:]:
    k,v=a.split("="); CFG[k]=json.loads(v) if v[0] in "[0123456789-" else v
C=type("C",(),CFG)
KN="standalone__gqa_softmax__near_ridge_kernel"
ST=C.st.replace('_',' '); QM=C.ql.replace('_',' '); START=C.start; NS=START[-1]+16; PRE=C.mode=="pre"
VB=1024+C.vpad; VS=8*VB; VWIN=98304
FLB=162816
def vslot(i): return FLB-(i+1)*VS
vK=1; vV=5; vDK=9; vDV=11; vQ=12; PT=(13,14,13,14); vFW=0; vFR=90; vCNT=92; vFL=93; vST=15; vPF=94; STG=16; LAND=32; NEGM=48; SB=64; PB=80; TM=88; TM2=89; RL=91; RR=91; OB=96
aK=0; aV=64; aQ=128; aL=208; aONE=228
CSC=struct.unpack("<I",struct.pack("<f",1.4426950408889634*128**-0.5))[0]
def O(j): return OB+32*(j%5)
def land(j): return {1:O(4),2:O(4)+16}.get(j,LAND)
units=[(t,j) for t in range(NS) for j in range(8) if START[j]<=t<START[j]+16]
nU=len(units); assert nU==128
first={}; last={}; ufirst={}; ulast={}
for u,(t,j) in enumerate(units):
    first.setdefault(t,u); last[t]=u; ufirst.setdefault(j,u); ulast[j]=u
M=[]; qk={}; pv={}; s0={}
for u in range(nU+2):
    s0[u]=len(M)
    if u<nU:
        t,j=units[u]; qk[u]=[]
        for kb in range(2):
            for ks in range(4):
                d=R("v",SB+8*(u&1)+4*kb,4)
                c=d if ks else (R("v",NEGM+4*(j%4),4) if PRE and u!=ufirst[j] else "0")
                qk[u].append(len(M)); M.append(mfma(d,R("a",aK+32*(t&1)+16*kb+4*ks,4),R("a",aQ+16*(j%5)+4*ks,4),c))
    if u>=2:
        x=u-2; t,j=units[x]; pv[x]=[]; p=R("v",PB+4*(x&1),4); f=x==ufirst[j]
        for db in range(8):
            d=R("v",O(j)+4*db,4)
            pv[x].append(len(M)); M.append(mfma(d,R("a",aV+32*(t&1)+4*db,4),p,"0" if f else d))
        d=R("a",aL+4*(j%5),4)
        pv[x].append(len(M)); M.append(mfma(d,R("a",aONE,4),p,"0" if f else d))
NG=len(M); s0[nU+2]=NG; TAIL=NG+400
B={t:qk[first[t]][0] for t in range(NS)}; B[0]=-1
FL=lambda t: C.sync=='flag' and t>=C.flag0
AR={t:(max(B[t]-C.fd,B[t-1]+1) if FL(t) and t>0 else B[t]) for t in range(NS)}
class T:
    n=0
    def __init__(s,ins,cost,rel,pd,hd,deps=(),cls=1):
        s.ins=ins if isinstance(ins,list) else [ins]; s.cost=cost; s.rel=rel; s.pd=min(pd,hd); s.hd=hd; s.deps=list(deps); s.cls=cls
        s.soft=0; s.gap=None; s.id=T.n; T.n+=1; tasks.append(s)
tasks=[]
def chain(lst,rel,p0,p1,hd,deps=()):
    prev=None; out=[]
    for i,(ins,cost) in enumerate(lst):
        l=ins if isinstance(ins,list) else [ins]; cls=0 if any(x.k in("vmem","ds") for x in l) else 1
        d=list(deps) if prev is None else [(prev,1 if (cls==0 or prev.ins[-1].k=="trans" or l[0].k=="perm") else 0)]
        prev=T(ins,cost,rel,int(p0+(p1-p0)*i/max(1,len(lst))),hd,d,cls); out.append(prev)
    return out
def maxchain(S,nm):
    v=lambda i:f"v{S+i}"; m=f"v{TM}"; m2=f"v{TM2}"
    L=[(valu("v_max3_f32",m,v(0),v(1),v(2)),1),(valu("v_max3_f32",m,m,v(3),v(4)),1),(valu("v_max3_f32",m,m,v(5),v(6)),1),
       (valu("v_max_f32",m,v(7),m),1),(valu("v_mov_b32",m2,m),1),(valu("v_permlane32_swap_b32",m,m2),2),(valu("v_max_f32",m,m2,m),1),
       (valu("v_mov_b32",m2,m),1),(valu("v_permlane16_swap_b32",m,m2),2),(valu("v_max_f32",m,m2,m),1)]
    L.append((valu("v_sub_f32",f"v{nm}","0",m),1) if PRE else (valu("v_mul_f32",f"v{nm}","s37",m),1))
    return L
for u,(t,j) in enumerate(units):
    S=SB+8*(u&1); P=PB+4*(u&1); nm=NEGM+4*(j%4); a=s0[u+1]; n=s0[u+2]-a
    hdc=[min(qk[u+2][4*(c>>1)]-1 if u+2<nU else TAIL, pv[u][0]-2) for c in range(4)]
    dep0=[]
    if u==ufirst[j]:
        r=qk[u][7]+3; ch=chain(maxchain(S,nm),r,r,r+6,hdc[0]-4); dep0=[(ch[-1],0)]
        for x in ch: x.soft=3
        if PRE:
            nu=[x for x in range(u+1,nU) if units[x][1]==j][0]
            for i in range(1,4): T(valu("v_mov_b32",f"v{nm+i}",f"v{nm}"),1,r,r+10,max(qk[nu][0]-2,r-3),dep0).soft=3
            for x in ch: x.hd=min(x.hd,max(qk[nu][0]-2,r-3)); x.pd=min(x.pd,x.hd)
    pe=None; pf=None; ex=[]
    for e in range(8):
        rel=qk[u][4*(e>>2)+3]+4; pd=a+(2*e+1)*n//17; hd=hdc[e>>1]-1; d=[]
        if not PRE: f=valu("v_fma_f32",f"v{S+e}",f"v{S+e}","s34",f"v{nm}")
        elif u==ufirst[j]: f=valu("v_add_f32",f"v{S+e}",f"v{nm}",f"v{S+e}")
        else: f=None
        if f: pf=T(f,1,rel,pd-1,hd,dep0+([(pf,0)] if pf else [])); d.append((pf,0)); pf.soft=4
        pe=T(valu("v_exp_f32",f"v{S+e}",f"v{S+e}"),2,rel,pd,hd,d+([(pe,0)] if pe else [])); ex.append(pe); pe.soft=4
    for c in range(4):
        T(valu("v_cvt_pk_bf16_f32",f"v{P+c}",f"v{S+2*c}",f"v{S+2*c+1}"),1,pv[u-2][8] if u>=2 else 0,a+(4*c+4)*n//17,hdc[c],[(ex[2*c+1],1)])
bar={t:dict(vm=set(),ds=set(),need=False) for t in range(-1,NS)}
def kread(t,f):
    kt=t%16; d=aK+32*(t&1)+4*f
    return Ins(f"ds_read_b128 {R('a',d,4)}, v{vK+(f&3)} offset:{(kt&7)*8192+(f>>2)*4096}","ds",[f"v{vK+(f&3)}"],regs("a",d,4),tag=f"rK{t}")
KR={}; prevk=None
for t in range(1,NS):
    KR[t]=[]
    if t<16: bar[t-1]["vm"].add(f"K{t}"); bar[t-1]["need"]=True
    tog=[]
    if t%8==0: tog=[T(valu("v_xor_b32",f"v{vK+i}","0x10000",f"v{vK+i}"),1,0,0,qk[first[t]][0]-C.dslead-1,[(prevk,0)]) for i in range(4)]
    for f in range(8):
        rel=max(qk[last[t-2]][f] if t>=2 else 0, B[t-1]+1 if t<16 else 0); hd=max(rel,qk[first[t]][f]-C.dslead)
        prevk=T(kread(t,f),1,rel,hd-4,hd,([(prevk,0)] if prevk else [])+[(x,1) for x in tog],0); KR[t].append(prevk)
Vx={}; VR={}; prevv=None; vs={}
ring=0
for s in range(NS):
    Vx[s]=max(x for x in range(NS) if x==0 or pv[first[s]][0]-B[x]>=22)
    bar[Vx[s]]["vm"].add(f"V{s}"); bar[Vx[s]]["need"]=True
    if s<len(C.vearly): vs[s]=C.vearly[s]
    elif s>=35 and NS>35: vs[s]=[6,5,4,3,vs[32],vs[33],vs[34]][(s-35)%7]
    else: vs[s]=2-ring%3; ring+=1
    VR[s]=[]
    for db in range(8):
        for h in range(2):
            d=aV+32*(s&1)+4*db+2*h; off=vslot(vs[s])-VWIN+h*4*VB+8*(db&1); assert 0<=off<65536
            ins=Ins(f"ds_read_b64_tr_b16 {R('a',d,2)}, v{vV+(db>>1)} offset:{off}","ds",[f"v{vV+(db>>1)}"],regs("a",d,2),tag=f"rV{s}")
            rel=max(pv[last[s-2]][db] if s>=2 else 0,B[Vx[s]]+1); hd=max(rel,pv[first[s]][db]-C.dslead)
            prevv=T(ins,1,rel,hd-8,hd,[(prevv,0)] if prevv else [],0); VR[s].append(prevv)
occ=[]
for t in range(16):
    lt=max(x for x in range(NS) if x%16==t)
    occ.append((AR[t-1] if t else -2,f"K{t}",t*8192,t*8192+8192,max(x.hd for x in KR[lt]) if lt else 0,f"rK{lt}"))
for s in range(NS): occ.append((AR[Vx[s]]+0.5,f"V{s}",vslot(vs[s]),vslot(vs[s])+VS,max(x.hd for x in VR[s]),f"rV{s}"))
def dma(name,h):
    i=int(name[1:]); L=[]
    if name[0]=="K": kt=i; sp,sb,m0,va,off=24,20,f"s29, {kt*8192+h*4096}",vDK+h,0
    else: kt=i%16; sp,sb,m0,va,off=26,22,f"s30, {vslot(vs[i])+h*C.vpad}",vDV,1024*h
    if h==0: L+= [salu(f"s_add_u32 s{sp}, s{sb}, {kt*8192}"),salu(f"s_addc_u32 s{sp+1}, s{sb+1}, 0")]
    L.append(salu(f"s_add_u32 m0, {m0}",m0=1))
    L.append(Ins(f"global_load_lds_dwordx4 v{va}, s[{sp}:{sp+1}] offset:{off}"+(C.kl if name[0]=="K" else C.vl if i<16 else C.vl2).replace("_"," "),"vmem",[f"v{va}"],[],dma=1,tag=name))
    return L
def qoff(r,j): return [salu(f's_add_u32 s{r}, s92, {j*16384}'),salu(f's_and_b32 s{r}, s{r}, 0x1ffff'),salu(f's_add_u32 s{r}, s{r}, s31')]
def qload(j,ks):
    d=(R("v",land(j)+4*ks,4) if PRE else R("a",aQ+16*(j%5)+4*ks,4))
    L=[]
    return L+[Ins(f"buffer_load_dwordx4 {d}, v{vQ}, s[12:15], s{60+j} offen offset:{64*ks}{QM}","vmem",[f"v{vQ}"],opregs(d))]
def prescale(j):
    L=[]
    for i in range(16):
        x=f"v{land(j)+i}"; a,b=f"v{PT[2*(i&1)]}",f"v{PT[2*(i&1)+1]}"
        L+=[valu("v_lshlrev_b32",a,"16",x),valu("v_and_b32",b,"s35",x),valu("v_mul_f32",a,"s34",a),valu("v_mul_f32",b,"s34",b),
            valu("v_cvt_pk_bf16_f32",x,a,b),valu("v_accvgpr_write_b32",f"a{aQ+16*(j%5)+i}",x)]
    return L
loads=[]
for o in occ:
    fr=-1
    for p in occ:
        if p[0]<o[0] and p[2]<o[3] and o[2]<p[3]:
            y=min(x for x in range(NS) if AR[x]>=p[4]+(1 if FL(x) else 4)); bar[y]["ds"].add(p[5]); bar[y]["need"]=True; fr=max(fr,B[y])
    assert fr<0 or fr<o[0]-20,(o,fr)
    loads.append((o[0],fr+1 if fr>=0 else -10**6,C.lookK if o[1][0]=="K" else C.lookV,[dma(o[1],h) for h in range(2)],o[1]))
pw={}
for j in range(8):
    e=qk[ufirst[j]][0]-2
    pw[j]=(max(e-C.prew,(pw[j-1][1]+ (e-pw[j-1][1])//3) if j else -3),e) if PRE else (e,e)
    if j==0: pw[0]=(-3,-3)
    rel=-10**6
    if PRE and j>=3: rel=pw[j-1 if j>3 else 0][1]+1
    if not PRE and j>=5: rel=qk[ulast[j-5]][7]
    loads.append((pw[j][0],rel,C.lookQ,[qload(j,ks) for ks in range(4)],f"Q{j}"))
loads.sort(key=lambda x:x[0])
proloads=[]; QL={}; prev=None; inpro=True
for need,rel,look,il,key in loads:
    if inpro and rel<0 and need<=C.npro: proloads+=[i for l in il for i in l]; continue
    inpro=False
    for l in il:
        r=max(rel,int(need)-look,0)
        for i in l:
            sa=i.k=="salu"; dist=0 if (prev is None or (sa and prev.cls==-2) or (not sa and prev.cls==0)) else 1
            prev=T(i,0 if sa else 2,max(0,r-4) if sa else r,r,max(r,int(need)-1),[(prev,dist)] if prev else [],-2 if sa else 0)
    QL[key]=prev
PS={}
for j in range(1,8):
    if PRE:
        rel=max(pw[j][0],qk[ulast[j-5]][7] if j>=5 else 0)
        PS[j]=chain([(i,1) for i in prescale(j)],rel,rel,pw[j][1],pw[j][1],([(QL[f"Q{j}"],1)] if f"Q{j}" in QL else [])+([(PS[j-1][-1],0)] if j>1 else []))
def norm(j):
    o=O(j); L=[(valu("v_accvgpr_read_b32",f"v{RL}",f"a{aL+4*(j%5)}"),1),
       (Ins(f"v_cmp_ngt_f32 s[{70+2*j}:{71+2*j}], s36, v{RL}","valu",[f"v{RL}"],[]),1),(valu("v_rcp_f32",f"v{RR}",f"v{RL}"),2)]
    for n in range(4):
        L+=[(valu("v_mul_f32",f"v{o+8*n+i}",f"v{RR}",f"v{o+8*n+i}"),1) for i in range(8)]
        L+=[(valu("v_cvt_pk_bf16_f32",f"v{STG+4*n+i}",f"v{o+8*n+2*i}",f"v{o+8*n+2*i+1}"),1) for i in range(4)]
        d=regs("v",STG+4*n,4)
        L.append(([Ins(f"buffer_store_dwordx4 {R('v',STG+4*n,4)}, v{vQ}, s[16:19], s{60+j} offen offset:{64*n}{ST}","vmem",d+[f"v{vQ}"],[],store=1,data=set(d))],2))
    return L
pn=None; NT=[]
for j in range(8):
    rel=pv[ulast[j]][8]+4; hd=TAIL
    if j+5<8: hd=pv[ufirst[j+5]][0]-3
    if j+1<8: hd=min(hd,max(pv[ulast[j+1]][8]+3,rel+30))
    pn=chain(norm(j),rel,rel,min(hd,rel+150),hd,[(pn[-1],0)] if pn else []); NT+=pn
pc_=None; stubs=[]; cmpw=set()
for t in range(1,NS):
    if not bar[t]["need"]: continue
    if not FL(t): T(Ins("s_barrier","bar",vm_tags=bar[t]["vm"],ds_tags=bar[t]["ds"]),2,B[t],B[t],B[t],[],-1); continue
    a=AR[t]; r=min(max(a,B[t]-C.fr),B[t]-1)
    w=T(Ins(f"ds_write_b32 v{vFW}, v{vCNT}","ds",[f"v{vFW}",f"v{vCNT}"],[],vm_tags=bar[t]["vm"]),1,a,a,a,[(pc_,1)] if pc_ else [],0)
    w=T(Ins(f"ds_read_b32 v{vFL}, v{vFR}","ds",[f"v{vFR}"],[f"v{vFL}"]),1,r,r,r,[(w,0)],0)
    w=T(Ins(f"v_cmp_gt_u32 vcc, v{vCNT}, v{vFL}","valu",[f"v{vCNT}",f"v{vFL}"],[]),1,B[t]-1,B[t]-1,B[t]-1,[(w,0)])
    w=T(salu(f"s_cbranch_vccnz L_r{t}\nL_b{t}:"),0,B[t],B[t],B[t],[(w,1)],-2); cmpw.update((B[t]-1,B[t]))
    pc_=T(valu("v_add_u32",f"v{vCNT}","1",f"v{vCNT}"),1,B[t],B[t]+4,B[t]+1 if t+1<NS and AR[t+1]<B[t]+12 else B[t]+10,[(w,0)])
    stubs.append(f"L_r{t}:\nds_read_b32 v{vFL}, v{vFR}\ns_waitcnt lgkmcnt(0)\nv_cmp_gt_u32 vcc, v{vCNT}, v{vFL}\ns_cbranch_vccnz L_r{t}\ns_branch L_b{t}")
def pfetch(first):
    L=[] if first else [(Ins(f"v_add_co_u32 v{vPF}, s[86:87], s88, v{vPF}","valu",[f"v{vPF}"],[f"v{vPF}"],wsgpr=1),1),(Ins(f"v_addc_co_u32 v{vPF+1}, s[86:87], 0, v{vPF+1}, s[86:87]","valu",[f"v{vPF+1}"],[f"v{vPF+1}"]),1)]
    return L+[(Ins(f"global_load_dword a232, v[{vPF}:{vPF+1}], off","vmem",regs("v",vPF,2),[]),2)]
if C.pf:
    pp=None
    for t in C.pfx:
        c=chain(pfetch(0),B[t],B[t],B[t]+6,B[t]+30,[(pp,1)] if pp else []); c[1].deps=[(c[0],1)]; pp=c[-1]
def drop(f):
    global tasks
    dead=[x for x in tasks if f(x)]; ds_=set(id(x) for x in dead); tasks=[x for x in tasks if id(x) not in ds_]
    for x in tasks: x.deps=[d for d in x.deps if id(d[0]) not in ds_]
if 'd' in C.abl: drop(lambda x:any(i.meta.get('dma') for i in x.ins))
if 'b' in C.abl: drop(lambda x:x.ins[0].k=='bar')
for x in tasks:
    if x.ins[0].k=='bar':
        if 'B' in C.abl: x.ins[0].t="s_nop 0"
        if 'W' in C.abl: x.ins[0].meta["vm_tags"]=set()
if 'p' in C.abl: drop(lambda x:any(x in PS[j] for j in PS))
if 'q' in C.abl: drop(lambda x:'buffer_load' in x.ins[-1].t)
if 's' in C.abl: drop(lambda x:'buffer_store' in x.ins[-1].t)
if 'n' in C.abl: drop(lambda x:x in NT)
gaps=[[] for _ in range(TAIL+1)]; used=[0]*(TAIL+1); forced=set(); sused=[0]*(TAIL+1)
def place(x,g,fo=False):
    for d,dist in x.deps:
        if d.gap is None: assert fo; place(d,g,True)
        if d.gap==g and x.cls<d.cls: forced.add(g)
    assert x.rel-x.soft<=g,(x.ins[0].t,x.rel,g)
    x.gap=g; gaps[g].append(x); used[g]+=x.cost
    if x.cls==-2:
        used[g]+=sused[g]>0; sused[g]+=1
pend=sorted(tasks,key=lambda x:(x.rel,x.id)); act=[]; pi=0
for g in range(TAIL+1):
    while pi<len(pend) and min(pend[pi].rel,pend[pi].hd)<=g: act.append(pend[pi]); pi+=1
    for x in sorted([x for x in tasks if x.gap is None and x.hd<=g],key=lambda x:(x.cls>=0,x.id)):
        if x.gap is None: place(x,g,True)
    if not sused[g]:
        rs=sorted([x for x in act if x.gap is None and x.cls==-2 and x.rel<=g and all(d.gap is not None and d.gap+dist<=g for d,dist in x.deps)],key=lambda x:(x.pd,x.id))
        if rs: place(rs[0],g)
    while used[g]<2:
        act=[x for x in act if x.gap is None]
        rd=sorted([x for x in act if x.rel<=g and all(d.gap is not None and d.gap+dist<=g for d,dist in x.deps)],key=lambda x:(x.pd,x.id))
        rd=[x for x in rd if x.cost<=2-used[g] and x.cls!=-2]
        if not rd: break
        x=rd[0]
        if used[g]==0 and x.cost==1:
            more=any(y.cost==1 for y in rd[1:]) or any(y.cost==1 and y.rel<=g and any(d is x and dist==0 for d,dist in y.deps) and all(d is x or (d.gap is not None and d.gap+dist<=g) for d,dist in y.deps) for y in act)
            two=[y for y in rd if y.cost==2]
            if not more and two and x.hd>g+1: x=two[0]
        place(x,g)
assert all(x.gap is not None for x in tasks)
over=sum(max(0,used[g]-2) for g in range(NG)); idle=sum(max(0,2-used[g]) for g in range(NG))
L=[]
def S_(txt):
    for l in txt.strip().split("\n"): L.append(salu(l.strip()))
def V_(op,d,*s,**m): L.append(valu(op,d,*s,**m))
nst=[0]
nd=[0]
def stamp():
    if C.diag>=0:
        if nd[0]==0: L.append(Ins('s_memrealtime s[46:47]\ns_memtime s[50:51]','salu'))
        if nd[0]==C.diag: L.append(Ins('s_memrealtime s[48:49]','salu')); L.append(Ins('s_waitcnt lgkmcnt(0)','wait'))
        nd[0]+=1
    if C.stamps and nst[0]<28:
        L.append(Ins(("s_memtime" if C.cyc else "s_memrealtime")+" s[98:99]","salu")); L.append(Ins("s_waitcnt lgkmcnt(0)","wait")); L.append(Ins(f"v_writelane_b32 v{vST}, s98, {nst[0]}","valu")); nst[0]+=1
S_(f"s_cmp_ge_u32 s2, {0 if C.empty else 256}\ns_cbranch_scc1 L_end\ns_load_dwordx4 s[4:7], s[0:1], 0\ns_load_dwordx4 s[8:11], s[0:1], 16")
if C.stamps: S_("s_memtime s[96:97]\ns_load_dwordx2 s[40:41], s[0:1], 40")
stamp()
W_,I_,G_,X_,Y_,Z_="v16","v17","v18","v19","v20","v21"
V_("v_lshrrev_b32",W_,"6","v0"); V_("v_and_b32",I_,"15","v0"); V_("v_bfe_u32",G_,"v0","4","2")
L.append(Ins(f"v_readfirstlane_b32 s28, {W_}","valu",[W_],[],rfl=1,wsgpr=1))
V_("v_lshlrev_b32","v22","8",I_); V_("v_lshl_add_u32",f"v{vQ}",G_,"4","v22")
S_("""s_and_b32 s3, s2, 7
s_lshr_b32 s42, s2, 3
s_lshl_b32 s3, s3, 5
s_add_u32 s3, s3, s42
s_lshr_b32 s42, s3, 2
s_lshl_b32 s42, s42, 17
s_lshl_b32 s31, s3, 17
s_lshl_b32 s43, s28, 12
s_add_u32 s31, s31, s43
s_lshl_b32 s29, s28, 10""")
S_(f"s_mul_i32 s30, s28, {2*VB}\ns_mov_b32 s14, 0x2000000\ns_mov_b32 s15, 0x20000\ns_mov_b32 s18, 0x2000000\ns_mov_b32 s19, 0x20000")
for j in range(8): S_(f"s_add_u32 s{60+j}, s31, {j*16384}")
V_("v_lshl_add_u32",X_,W_,"2",G_); V_("v_xor_b32",Y_,I_,X_); V_("v_lshlrev_b32",X_,"8",X_)
V_("v_lshl_add_u32",f"v{vDK}",Y_,"4",X_); V_("v_add_u32",f"v{vDK+1}","0x1000",f"v{vDK}")
V_("v_lshlrev_b32",X_,"2",G_); V_("v_xor_b32",X_,I_,X_); V_("v_lshlrev_b32",X_,"4",X_)
V_("v_lshl_add_u32",X_,G_,"8",X_); V_("v_lshl_add_u32",f"v{vDV}",W_,"11",X_)
if C.pf:
    S_("s_getpc_b64 s[44:45]\nL_pc:\ns_mov_b32 s88, ((L_slow-L_pc)>>12)<<10")
    V_("v_mul_u32_u24",f"v{vPF}","((L_slow-L_pc)>>12)<<2","v0"); V_("v_mov_b32",f"v{vPF+1}","s45")
    L.append(Ins(f"v_add_co_u32 v{vPF}, vcc, s44, v{vPF}\ns_nop 1\nv_addc_co_u32 v{vPF+1}, vcc, 0, v{vPF+1}, vcc","valu",[],[]))
L.append(Ins("s_waitcnt lgkmcnt(0)","wait"))
S_("""s_mov_b32 s12, s4
s_mov_b32 s13, s5
s_add_u32 s20, s6, s42
s_addc_u32 s21, s7, 0
s_add_u32 s22, s8, s42
s_addc_u32 s23, s9, 0""")
pl=[]; cur=[]
for i in proloads:
    cur.append(i)
    if i.k=="vmem": pl.append(cur); cur=[]
if C.pf: pl.insert(C.pf,[pfetch(1)[0][0]])
for x in pl[:C.nA]: L+=x
pl=pl[C.nA:]
S_(f"s_mov_b32 s16, s10\ns_mov_b32 s17, s11\ns_mov_b32 s34, {CSC:#x}\ns_mov_b32 s35, 0xffff0000\ns_mov_b32 s36, {C.thr:#x}\ns_mov_b32 s37, {CSC|0x80000000:#x}\ns_mov_b64 s[38:39], {-1 if C.force_slow else 0}")
for ks in range(4):
    V_("v_add_u32",X_,str(4*ks),G_); V_("v_xor_b32",X_,I_,X_); V_("v_lshl_add_u32",f"v{vK+ks}",X_,"4","v22")
V_("v_bfe_u32",X_,"v0","2","2"); V_("v_and_b32",Y_,"3","v0"); V_("v_mul_u32_u24",Z_,str(VB),G_)
V_("v_lshl_add_u32",Z_,X_,"8",Z_); V_("v_lshl_add_u32",Z_,Y_,"4",Z_); V_("v_add_u32",Z_,hex(VWIN),Z_)
V_("v_mul_u32_u24",f"v{vFR}","0x104",Y_); V_("v_add_u32",f"v{vFR}",hex(FLB),f"v{vFR}")
for n in range(4):
    V_("v_xor_b32",Y_,str(n),X_); V_("v_lshl_add_u32",f"v{vV+n}",Y_,"6",Z_)
V_("v_mov_b32",X_,"0x3f803f80")
for i in range(4): V_("v_accvgpr_write_b32",f"a{aONE+i}",X_)
V_("v_lshlrev_b32","v0","2","v0"); V_("v_add_u32","v0",hex(FLB),"v0"); V_("v_mov_b32",f"v{vCNT}","0")
L.append(Ins(f"ds_write_b32 v{vFW}, v{vCNT}","ds",[f"v{vFW}",f"v{vCNT}"],[],tag="fi")); V_("v_mov_b32",f"v{vCNT}","1")
ps=prescale(0) if PRE else []
npl=len(pl)
for q4 in range(4):
    if q4==3:
        stamp(); L.append(Ins("s_barrier","bar",vm_tags={"K0"},ds_tags={"fi"})); L+=[kread(0,f) for f in range(8)]
    L+=ps[24*q4:24*q4+24]
    for x in pl[npl*q4//4:npl*(q4+1)//4]: L+=x
L.append(Ins("s_barrier","bar",vm_tags=bar[0]["vm"],ds_tags=set()))
stamp()
stg={qk[first[t]][0] for t in range(NS) if t%C.stev==0 and t>0}
for g in range(TAIL+1):
    if g in stg: stamp()
    if g<NG: L.append(M[g])
    xs=gaps[g] if g in forced or g>=NG else sorted(gaps[g],key=lambda x:x.cls)
    post=[]
    for x in xs: L+=x.ins
L=waits(L)
L,nn=hazards(L)
body=[i.t for i in L]
if C.stamps:
    tm="s_memtime" if C.cyc else "s_memrealtime"
    body.append(f"{tm} s[90:91]\ns_waitcnt vmcnt(0)\n{tm} s[100:101]\ns_memtime s[98:99]\ns_waitcnt lgkmcnt(0)")
    for i in range(nst[0],29): body.append(f"v_writelane_b32 v{vST}, s90, {i}")
    body.append(f"v_writelane_b32 v{vST}, s100, 29\nv_writelane_b32 v{vST}, s96, 30\nv_writelane_b32 v{vST}, s98, 31")
    body.append("s_mov_b32 s42, 0x10000000\ns_mov_b32 s43, 0x20000\ns_lshl_b32 s3, s2, 2\ns_add_u32 s3, s3, s28\ns_lshl_b32 s3, s3, 8\nv_mbcnt_lo_u32_b32 v88, -1, 0\nv_mbcnt_hi_u32_b32 v88, -1, v88\nv_lshlrev_b32 v88, 2, v88")
    body.append(f"buffer_store_dword v{vST}, v88, s[40:43], s3 offen")
for j in range(8): body.append(f"s_or_b64 s[38:39], s[38:39], s[{70+2*j}:{71+2*j}]")
if C.diag>=0:
    if C.diag==98: body.append("s_waitcnt vmcnt(0)\ns_memrealtime s[48:49]\ns_waitcnt lgkmcnt(0)")
    if C.diag==99: body.append("s_waitcnt vmcnt(0)\ns_memtime s[48:49]\ns_waitcnt lgkmcnt(0)\ns_sub_u32 s48, s48, s50\ns_lshr_b32 s48, s48, 5\ns_add_u32 s48, s48, s46")
    body.append("s_sub_u32 s48, s48, s46\ns_mul_i32 s48, s48, 4\ns_add_u32 s48, s48, 6000\nL_spin:\ns_memrealtime s[52:53]\ns_waitcnt lgkmcnt(0)\ns_sub_u32 s52, s52, s46\ns_cmp_lt_u32 s52, s48\ns_cbranch_scc1 L_spin")
body.append("s_cmp_eq_u64 s[38:39], 0\ns_cbranch_scc1 L_end")
def slow():
    X=["L_slow:"]; A=X.append; nop="s_nop 7\ns_nop 1"
    A("s_waitcnt vmcnt(0) lgkmcnt(0)\ns_barrier\ns_mul_i32 s46, s28, 40960\ns_lshl_b32 s47, s28, 11")
    A(f"s_sub_u32 s48, s46, {VWIN}\nv_subrev_u32 v{vDV}, s47, v{vDV}\nv_add_u32 v{vDK}, 0x1000, v{vQ}")
    for n in range(4): A(f"v_add_u32 v{vV+n}, s48, v{vV+n}")
    A("s_mov_b32 s44, 0\nL_sj:\ns_lshl_b32 s32, s44, 14\ns_add_u32 s32, s32, s31")
    for ks in range(4): A(f"buffer_load_dwordx4 a[{aQ+4*ks}:{aQ+4*ks+3}], v{vQ}, s[12:15], s32 offen offset:{64*ks}")
    def kq():
        for f in range(8): A(f"global_load_dwordx4 a[{4*f}:{4*f+3}], v{vQ if f<4 else vDK}, s[24:25] offset:{64*(f&3)}")
    def qkm():
        for f in range(8):
            d=R("v",SB+4*(f>>2),4); A(mfma(d,R("a",4*f,4),R("a",aQ+4*(f&3),4),d if f&3 else "0").t)
        A(nop)
    adv="s_add_u32 s24, s24, 8192\ns_addc_u32 s25, s25, 0\ns_add_u32 s45, s45, 1\ns_cmp_lt_u32 s45, 16"
    A(f"v_mov_b32 v{TM}, 0xff800000\ns_mov_b64 s[24:25], s[20:21]\ns_mov_b32 s45, 0\nL_s1:")
    kq(); A("s_waitcnt vmcnt(0)"); qkm()
    for i in range(4): A(f"v_max3_f32 v{TM}, v{TM}, v{SB+2*i}, v{SB+2*i+1}")
    A(adv+"\ns_cbranch_scc1 L_s1")
    for p in ("32","16"): A(f"v_mov_b32 v{TM2}, v{TM}\ns_nop 1\nv_permlane{p}_swap_b32 v{TM}, v{TM2}\ns_nop 1\nv_max_f32 v{TM}, v{TM2}, v{TM}")
    A(f"v_mul_f32 v{TM}, s37, v{TM}")
    for i in range(32): A(f"v_mov_b32 v{OB+i}, 0")
    for i in range(4): A(f"v_accvgpr_write_b32 a{aL+i}, 0")
    A("s_mov_b64 s[24:25], s[20:21]\ns_mov_b64 s[26:27], s[22:23]\ns_mov_b32 s45, 0\nL_s2:")
    kq()
    for bi in range(8):
        A(f"s_add_u32 m0, s46, {bi*VB-(bi&3)*1024}\ns_nop 0\nglobal_load_lds_dwordx4 v{vDV}, s[26:27] offset:{(bi&3)*1024}")
        if bi&3==3: A("s_add_u32 s26, s26, 4096\ns_addc_u32 s27, s27, 0")
    A("s_waitcnt vmcnt(0)")
    for db in range(8):
        for h in range(2): A(f"ds_read_b64_tr_b16 a[{aV+4*db+2*h}:{aV+4*db+2*h+1}], v{vV+(db>>1)} offset:{h*4*VB+8*(db&1)}")
    qkm()
    for e in range(8): A(f"v_fma_f32 v{SB+e}, v{SB+e}, s34, v{TM}")
    for e in range(8): A(f"v_exp_f32 v{SB+e}, v{SB+e}")
    A("s_nop 0")
    for c in range(4): A(f"v_cvt_pk_bf16_f32 v{PB+c}, v{SB+2*c}, v{SB+2*c+1}")
    A("s_waitcnt lgkmcnt(0)\ns_nop 1")
    for db in range(8): A(mfma(R("v",OB+4*db,4),R("a",aV+4*db,4),R("v",PB,4),R("v",OB+4*db,4)).t)
    A(mfma(R("a",aL,4),R("a",aONE,4),R("v",PB,4),R("a",aL,4)).t)
    A(nop+"\n"+adv+"\ns_cbranch_scc1 L_s2")
    A(f"v_accvgpr_read_b32 v{RL}, a{aL}\nv_rcp_f32 v{RR}, v{RL}\ns_nop 0")
    for i in range(32): A(f"v_mul_f32 v{OB+i}, v{RR}, v{OB+i}")
    for i in range(16): A(f"v_cvt_pk_bf16_f32 v{STG+i}, v{OB+2*i}, v{OB+2*i+1}")
    for n in range(4): A(f"buffer_store_dwordx4 v[{STG+4*n}:{STG+4*n+3}], v{vQ}, s[16:19], s32 offen offset:{64*n}")
    A("s_waitcnt vmcnt(0)\ns_add_u32 s44, s44, 1\ns_cmp_lt_u32 s44, 8\ns_cbranch_scc1 L_sj")
    return X
body+=slow(); body.append("s_branch L_end"); body+=stubs; body.append("L_end:")
hdr=open("standalone__gqa_softmax__near_ridge.s.ref").read().split("; Override")[0]
txt=hdr+f"""; @launch grid=(256,1,1) block=(256,1,1) lds=163840
; Generated by a hand-written scheduler script. One workgroup per (batch, q head), one wave per SIMD.
; S^T = K Q^T and O^T = V^T P^T with 16x16x32 bf16 MFMA; row sums by an MFMA with a ones operand.
; Softmax shift = max over the block's first 32 keys; a row sum outside the safe range sends the wave to the
; exact path at the end (true row max, then the same computation), which rewrites its rows.
.amdgcn_target "amdgcn-amd-amdhsa--gfx950"
.text
.globl {KN}
.p2align 8
.type {KN},@function
{KN}:
"""+"\n".join(body)+f"""
s_endpgm
.section .rodata,"a"
.p2align 6
.amdhsa_kernel {KN}
  .amdhsa_next_free_vgpr 512
  .amdhsa_next_free_sgpr 102
  .amdhsa_accum_offset 256
  .amdhsa_group_segment_fixed_size 0
  .amdhsa_kernarg_size 48
  .amdhsa_user_sgpr_count 2
  .amdhsa_user_sgpr_kernarg_segment_ptr 1
  .amdhsa_system_sgpr_workgroup_id_x 1
.end_amdhsa_kernel
"""
open(sys.argv[1],"w").write(txt)
print('model/step:',' '.join(str(sum(16+4*max(0,used[g]-2) for g in range(qk[first[t]][0],qk[first[t+C.stev]][0]))) for t in range(0,NS-C.stev,C.stev)),file=sys.stderr)
from collections import Counter
print(f"NS={NS} gaps={NG} over={over} idle={idle} nops={nn} est_cyc={NG*16+over*4} forced={len(forced)} proloads={sum(i.k=='vmem' for i in proloads)}",dict(Counter(i.k for i in L)))
```

```python
import sys, json, struct
from asmlib import *
CFG=dict(start=[0,0,8,12,16,18,22,26], mode="pre", vpad=8, gdma=1, lookK=70, lookV=70, lookQ=100, prew=[0,0,50,100], stamps=0,
         vearly=[6,5,4,3,2,1,0,5,4,3], thr=0x4e800000, nslow=0, dslead=8, npro=40, force_slow=0, sync='flag', fd=20, cap=3, late=0, one4=0, eearly=100, efix=1, ecost=2, edist=2, eord=0, z=1, zr=40, dbg=0, fmin=14, dl=1, dlj=4, qs=2, fl=0, flstep=1, sal=0, srt=0, nmin=70, fet=12, fde=12, qn=[-3,-1.5], probe=0, pn=48, pfm=1, b0=-1, vx=[], look2=120, lt=[10,32], fr=7, fc=1, nA=12, pfx=[10,21], flag0=1, abl='_', cyc=0, diag=-1, rq=1, rk=0, stev=2, empty=0, pf=-1, st='_nt_sc1', st2='_', stn=8, stt=0, nj=5, nhd=30, nspan=150, nb=30, ql='_', kl='_', vl='_', vl2='_')
for a in sys.argv[2:]:
    k,v=a.split("="); CFG[k]=json.loads(v) if v[0] in "[0123456789-" else v
C=type("C",(),CFG)
KN="standalone__gqa_softmax__near_ridge_kernel"
ST=C.st.replace('_',' '); QM=C.ql.replace('_',' '); START=C.start; NS=START[-1]+16; PRE=C.mode=="pre"
VB=1024+C.vpad; VS=8*VB; VWIN=98304
FLB=162816
def vslot(i): return FLB-(i+1)*VS
vK=1; vV=5; vDK=9; vDV=11; vQ=12; PT=(13,14,13,14); vFW=0; vFR=90; vCNT=92; vFL=93; vST=15; vPF=94; STG=16; LAND=32; NEGM=48; SB=64; PB=80; TM=88; TM2=89; RL=91; RR=91; OB=96
aK=0; aV=64; aQ=128; aL=208; aONE=228
CSC=struct.unpack("<I",struct.pack("<f",1.4426950408889634*128**-0.5))[0]
def O(j): return OB+32*(j%5)
def land(j): return {1:O(4),2:O(4)+16}.get(j,LAND+16*(j&1) if C.dl else LAND)
units=[(t,j) for t in range(NS) for j in range(8) if START[j]<=t<START[j]+16]
nU=len(units); assert nU==128
first={}; last={}; ufirst={}; ulast={}
for u,(t,j) in enumerate(units):
    first.setdefault(t,u); last[t]=u; ufirst.setdefault(j,u); ulast[j]=u
M=[]; qk={}; pv={}; s0={}
for u in range(nU+2):
    s0[u]=len(M)
    if u<nU:
        t,j=units[u]; qk[u]=[]
        for kb in range(2):
            for ks in range(4):
                d=R("v",SB+8*(u&1)+4*kb,4)
                c=d if ks else (R("v",NEGM+4*(j%4),4) if PRE and not C.z and u!=ufirst[j] else "0")
                qk[u].append(len(M)); M.append(mfma(d,R("a",aK+32*(t&1)+16*kb+4*ks,4),R("a",aQ+16*(j%5)+4*ks,4),c))
    if u>=2:
        x=u-2; t,j=units[x]; pv[x]=[]; p=R("v",PB+4*(x&1),4); f=x==ufirst[j]
        for db in range(8):
            d=R("v",O(j)+4*db,4)
            pv[x].append(len(M)); M.append(mfma(d,R("a",aV+32*(t&1)+4*db,4),p,"0" if f else d))
        d=R("a",aL+4*(j%5),4)
        pv[x].append(len(M)); M.append(mfma(d,R("a",aONE,4),p,"0" if f else d))
NG=len(M); s0[nU+2]=NG; TAIL=NG+400
B={t:qk[first[t]][0] for t in range(NS)}; B[0]=C.b0
FL=lambda t: C.sync=='flag' and t>=C.flag0
AR={t:(max(B[t]-(C.fd if t>C.fet else C.fde),B[t-1]+1) if FL(t) and t>0 else B[t]) for t in range(NS)}
VH={}
for t in range(1,NS):
    h=pv[first[t-1]][7]-C.dslead+1
    if FL(t) and AR[t]<h<=B[t]: AR[t]=min(h,B[t]-C.fmin); VH[t-1]=h-AR[t]
class T:
    n=0
    def __init__(s,ins,cost,rel,pd,hd,deps=(),cls=1):
        s.ins=ins if isinstance(ins,list) else [ins]; s.cost=cost; s.rel=rel; s.pd=min(pd,hd); s.hd=hd; s.deps=list(deps); s.cls=cls
        s.soft=0; s.gap=None; s.id=T.n; T.n+=1; tasks.append(s)
tasks=[]
def chain(lst,rel,p0,p1,hd,deps=()):
    prev=None; out=[]
    for i,(ins,cost) in enumerate(lst):
        l=ins if isinstance(ins,list) else [ins]; cls=0 if any(x.k in("vmem","ds") for x in l) else 1
        d=list(deps) if prev is None else [(prev,1 if (cls==0 or prev.ins[-1].k=="trans" or l[0].k=="perm") else 0)]
        prev=T(ins,cost,rel,int(p0+(p1-p0)*i/max(1,len(lst))),hd,d,cls); out.append(prev)
    return out
def maxchain(S,nm):
    v=lambda i:f"v{S+i}"; m=f"v{TM}"; m2=f"v{TM2}"
    L=[(valu("v_max3_f32",m,v(0),v(1),v(2)),1),(valu("v_max3_f32",m,m,v(3),v(4)),1),(valu("v_max3_f32",m,m,v(5),v(6)),1),
       (valu("v_max_f32",m,v(7),m),1),(valu("v_mov_b32",m2,m),1),(valu("v_permlane32_swap_b32",m,m2),2),(valu("v_max_f32",m,m2,m),1),
       (valu("v_mov_b32",m2,m),1),(valu("v_permlane16_swap_b32",m,m2),2),(valu("v_max_f32",m,m2,m),1)]
    L.append((valu("v_sub_f32",f"v{nm}","0",m),1) if PRE else (valu("v_mul_f32",f"v{nm}","s37",m),1))
    return L
for u,(t,j) in enumerate(units):
    S=SB+8*(u&1); P=PB+4*(u&1); nm=NEGM+4*(j%4); a=s0[u+1]; n=s0[u+2]-a
    hdc=[min(qk[u+2][4*(c>>1)]-1 if u+2<nU else TAIL, pv[u][0]-2) for c in range(4)]
    dep0=[]
    if u==ufirst[j] and not C.z:
        r=qk[u][7]+3; ch=chain(maxchain(S,nm),r,r,r+6,hdc[0]-4); dep0=[(ch[-1],0)]
        for x in ch: x.soft=3
        if PRE:
            nu=[x for x in range(u+1,nU) if units[x][1]==j][0]
            for i in range(1,4): T(valu("v_mov_b32",f"v{nm+i}",f"v{nm}"),1,r,r+10,max(qk[nu][0]-2,r-3),dep0).soft=3
            for x in ch: x.hd=min(x.hd,max(qk[nu][0]-2,r-3)); x.pd=min(x.pd,x.hd)
    pe=None; pf=None; ex=[]
    for e in range(8):
        rel=max(qk[u][4*(e>>2)+3]+4,a+(2*e+1)*n//17-C.eearly); pd=a+(2*e+1)*n//17; hd=hdc[e>>1]-1; d=[]
        if not PRE: f=valu("v_fma_f32",f"v{S+e}",f"v{S+e}","s34",f"v{nm}")
        elif u==ufirst[j] and not C.z: f=valu("v_add_f32",f"v{S+e}",f"v{nm}",f"v{S+e}")
        else: f=None
        if f: pf=T(f,1,rel,pd-1,hd,dep0+([(pf,0)] if pf else [])); d.append((pf,0)); pf.soft=4
        if C.efix and PRE and (C.z or u!=ufirst[j]) and rel<=pd<=hd: rel=hd=pd
        pe=T(valu("v_exp_f32",f"v{S+e}",f"v{S+e}"),C.ecost,rel,pd,hd,d+([(pe,C.edist)] if pe else [])); ex.append(pe); pe.soft=4
    for c in range(4):
        T(valu("v_cvt_pk_bf16_f32",f"v{P+c}",f"v{S+2*c}",f"v{S+2*c+1}"),1,pv[u-2][8] if u>=2 else 0,a+(4*c+4)*n//17,hdc[c],[(ex[2*c+1],1)])
bar={t:dict(vm=set(),ds=set(),need=False) for t in range(-1,NS)}
def kread(t,f):
    kt=t%16; d=aK+32*(t&1)+4*f
    return Ins(f"ds_read_b128 {R('a',d,4)}, v{vK+(f&3)} offset:{(kt&7)*8192+(f>>2)*4096}","ds",[f"v{vK+(f&3)}"],regs("a",d,4),tag=f"rK{t}")
KR={}; prevk=None
for t in range(1,NS):
    KR[t]=[]
    if t<16: bar[t-1]["vm"].add(f"K{t}"); bar[t-1]["need"]=True
    tog=[]
    if t%8==0: tog=[T(valu("v_xor_b32",f"v{vK+i}","0x10000",f"v{vK+i}"),1,0,0,qk[first[t]][0]-C.dslead-1,[(prevk,0)]) for i in range(4)]
    for f in range(8):
        rel=max(qk[last[t-2]][f] if t>=2 else 0, B[t-1]+1 if t<16 else 0); hd=max(rel,qk[first[t]][f]-C.dslead)
        prevk=T(kread(t,f),1,rel,hd-4,hd,([(prevk,0)] if prevk else [])+[(x,1) for x in tog],0); KR[t].append(prevk)
Vx={}; VR={}; prevv=None; vs={}
ring=0
for s in range(NS):
    Vx[s]=max(x for x in range(NS) if x==0 or pv[first[s]][0]-B[x]>=22)
    if s<len(C.vx): Vx[s]=C.vx[s]
    bar[Vx[s]]["vm"].add(f"V{s}"); bar[Vx[s]]["need"]=True
    if s<len(C.vearly): vs[s]=C.vearly[s]
    elif s>=35 and NS>35: vs[s]=[6,5,4,3,vs[32],vs[33],vs[34]][(s-35)%7]
    else: vs[s]=2-ring%3; ring+=1
    VR[s]=[]
    for db in range(8):
        for h in range(2):
            d=aV+32*(s&1)+4*db+2*h; off=vslot(vs[s])-VWIN+h*4*VB+8*(db&1); assert 0<=off<65536
            ins=Ins(f"ds_read_b64_tr_b16 {R('a',d,2)}, v{vV+(db>>1)} offset:{off}","ds",[f"v{vV+(db>>1)}"],regs("a",d,2),tag=f"rV{s}")
            rel=max(pv[last[s-2]][db] if s>=2 else 0,B[Vx[s]]+1); hd=max(rel,pv[first[s]][db]-C.dslead-VH.get(s,0))
            prevv=T(ins,1,rel,hd-8,hd,[(prevv,0)] if prevv else [],0); VR[s].append(prevv)
occ=[]
for t in range(16):
    lt=max(x for x in range(NS) if x%16==t)
    occ.append((AR[t-1] if t else -2,f"K{t}",t*8192,t*8192+8192,max(x.hd for x in KR[lt]) if lt else 0,f"rK{lt}"))
for s in range(NS): occ.append((AR[Vx[s]]+0.5,f"V{s}",vslot(vs[s]),vslot(vs[s])+VS,max(x.hd for x in VR[s]),f"rV{s}"))
def dma(name,h):
    i=int(name[1:]); L=[]
    if name[0]=="K": kt=i; sp,sb,m0,va,off=24,20,f"s29, {kt*8192+h*4096}",vDK+h,0
    else: kt=i%16; sp,sb,m0,va,off=26,22,f"s30, {vslot(vs[i])+h*C.vpad}",vDV,1024*h
    if h==0: L+= [salu(f"s_add_u32 s{sp}, s{sb}, {kt*8192}"),salu(f"s_addc_u32 s{sp+1}, s{sb+1}, 0")]
    L.append(salu(f"s_add_u32 m0, {m0}",m0=1))
    L.append(Ins(f"global_load_lds_dwordx4 v{va}, s[{sp}:{sp+1}] offset:{off}"+(C.kl if name[0]=="K" else C.vl if i<16 else C.vl2).replace("_"," "),"vmem",[f"v{va}"],[],dma=1,tag=name))
    return L
def qoff(r,j): return [salu(f's_add_u32 s{r}, s92, {j*16384}'),salu(f's_and_b32 s{r}, s{r}, 0x1ffff'),salu(f's_add_u32 s{r}, s{r}, s31')]
def qload(j,ks):
    d=(R("v",land(j)+4*ks,4) if PRE else R("a",aQ+16*(j%5)+4*ks,4))
    L=[]
    return L+[Ins(f"buffer_load_dwordx4 {d}, v{vQ}, s[12:15], s{60+j} offen offset:{64*ks}{QM}","vmem",[f"v{vQ}"],opregs(d))]
def prescale(j):
    L=[]
    for i in range(16):
        x=f"v{land(j)+i}"; a,b=f"v{PT[2*(i&1)]}",f"v{PT[2*(i&1)+1]}"
        L+=[valu("v_lshlrev_b32",a,"16",x),valu("v_and_b32",b,"s35",x),valu("v_mul_f32",a,"s34",a),valu("v_mul_f32",b,"s34",b),
            valu("v_cvt_pk_bf16_f32",x,a,b),valu("v_accvgpr_write_b32",f"a{aQ+16*(j%5)+i}",x)]
    return L
loads=[]
for o in occ:
    fr=-1
    for p in occ:
        if p[0]<o[0] and p[2]<o[3] and o[2]<p[3]:
            y=min(x for x in range(NS) if AR[x]>=p[4]+(1 if FL(x) else 4)); bar[y]["ds"].add(p[5]); bar[y]["need"]=True; fr=max(fr,B[y])
    assert fr<0 or fr<o[0]-20,(o,fr)
    loads.append((o[0],fr+1 if fr>=0 else -10**6,C.look2 if B[C.lt[0]]<o[0]<B[C.lt[1]] else C.lookK if o[1][0]=="K" else C.lookV,[dma(o[1],h) for h in range(2)],o[1]))
pw={}
for j in range(8):
    e=qk[ufirst[j]][0]-2
    pw[j]=(max(e-(C.prew[min(j,len(C.prew)-1)] if isinstance(C.prew,list) else C.prew),(pw[j-1][1]+ (e-pw[j-1][1])//3) if j else -3),e) if PRE else (e,e)
    if j==0: pw[0]=(-3,-3)
    if C.dl and j>=C.dlj: pw[j]=(pw[j-1][1]+1,e)
    rel=-10**6
    if PRE and j>=3: rel=pw[j-1 if j>3 else 0][1]+1
    if C.dl and j>=3: rel=-10**6 if j==3 else pw[j-2 if j>4 else 0][1]+1
    if C.dl and j>=C.dlj:
        t=START[j-1]-C.qs; loads.append((AR[Vx[t+2]]+0.7,max(rel,B[t]+3),10**4,[qload(j,ks) for ks in range(4)],f"Q{j}")); continue
    if not PRE and j>=5: rel=qk[ulast[j-5]][7]
    loads.append((C.qn[j] if j<len(C.qn) else pw[j][0],rel,C.lookQ,[qload(j,ks) for ks in range(4)],f"Q{j}"))
loads.sort(key=lambda x:(max(x[1],x[0]-x[2],0),x[0]) if C.srt else x[0])
fh=0; proloads=[]; QL={}; prev=None; inpro=True
for need,rel,look,il,key in loads:
    if inpro and rel<0 and need<=C.npro: proloads+=[i for l in il for i in l]; continue
    inpro=False
    for l in il:
        r=max(rel,int(need)-look,0)
        for i in l:
            sa=i.k=="salu"; dist=0 if (prev is None or (sa and prev.cls==-2) or (not sa and prev.cls==0)) else 1
            if not sa: fh=max(r,fh+C.flstep)
            prev=T(i,0 if sa else 2,max(0,r-4) if sa else r,r,min(max(r,int(need)-1),fh if fh<C.fl and not sa else 10**6),[(prev,dist)] if prev else [],-2 if sa else 0)
    QL[key]=prev
PS={}
for j in range(1,8):
    if PRE:
        rel=max(pw[j][0],qk[ulast[j-5]][7] if j>=5 else 0)
        PS[j]=chain([(i,1) for i in prescale(j)],rel,rel,pw[j][1],pw[j][1],([(QL[f"Q{j}"],1)] if f"Q{j}" in QL else [])+([(PS[j-1][-1],0)] if j>1 else []))
def norm(j):
    o=O(j); L=[(valu("v_accvgpr_read_b32",f"v{RL}",f"a{aL+4*(j%5)}"),1),
       (Ins(f"v_cmp_ngt_f32 s[{70+2*j}:{71+2*j}], s36, v{RL}","valu",[f"v{RL}"],[]),1),(valu("v_rcp_f32",f"v{RR}",f"v{RL}"),2)]
    if C.z: L[1:2]=[(valu("v_subrev_u32",f"v{TM}","s36",f"v{RL}"),1),(Ins(f"v_cmp_lt_u32 s[{70+2*j}:{71+2*j}], s33, v{TM}","valu",[f"v{TM}"],[]),1)]
    for n in range(4):
        L+=[(valu("v_mul_f32",f"v{o+8*n+i}",f"v{RR}",f"v{o+8*n+i}"),1) for i in range(8)]
        L+=[(valu("v_cvt_pk_bf16_f32",f"v{STG+4*n+i}",f"v{o+8*n+2*i}",f"v{o+8*n+2*i+1}"),1) for i in range(4)]
        d=regs("v",STG+4*n,4)
        L.append(([Ins(f"buffer_store_dwordx4 {R('v',STG+4*n,4)}, v{vQ}, s[16:19], s{60+j} offen offset:{64*n}{ST if j<C.stn else C.st2.replace('_',' ')}","vmem",d+[f"v{vQ}"],[],store=1,data=set(d))],2))
    return L
pn=None; NT=[]; p1=0
for j in range(8):
    rel=pv[ulast[j]][8]+4; hd=TAIL
    if j+5<8: hd=pv[ufirst[j+5]][0]-3
    if j+1<8: hd=min(hd,max(pv[ulast[j+1]][8]+3,rel+C.nmin))
    if j>=C.nj: hd=min(hd,rel+C.nhd)
    p0=max(rel,min(p1,hd-40)); p1=min(hd,p0+C.nspan)
    pn=chain(norm(j),rel,p0-C.nb*(j>=C.nj),p1-C.nb*(j>=C.nj),hd,[(pn[-1],0)] if pn else []); NT+=pn
    if C.sal and j<C.nj:
        E=START[j]+16
        for n,i in enumerate([i for i,x in enumerate(pn) if x.ins[0].k=="vmem"]):
            x=pn[i]; x.rel=B[E+C.sal[n]]+5; x.pd=x.rel; x.hd=x.rel+6
            if i+1<len(pn): pn[i+1].deps=[(pn[i-1],0)]
            for k in range(i):
                if pn[k].ins[0].k!="vmem": pn[k].hd=min(pn[k].hd,x.hd-1); pn[k].pd=min(pn[k].pd,x.hd-1-(i-k))
pc_=None; stubs=[]; cmpw=set()
for t in range(0 if C.b0>=0 else 1,NS):
    if not bar[t]["need"]: continue
    if not FL(t): T(Ins("s_barrier","bar",vm_tags=bar[t]["vm"],ds_tags=bar[t]["ds"]),2,B[t],B[t],B[t],[],-1); continue
    a=AR[t]; r=min(max(a,B[t]-C.fr),B[t]-1)
    w=T(Ins(f"ds_write_b32 v{vFW}, v{vCNT}","ds",[f"v{vFW}",f"v{vCNT}"],[],vm_tags=bar[t]["vm"]),1,a,a,a,[(pc_,1)] if pc_ else [],0)
    w=T(Ins(f"ds_read_b32 v{vFL}, v{vFR}","ds",[f"v{vFR}"],[f"v{vFL}"]),1,r,r,r,[(w,0)],0)
    w=T(Ins(f"v_cmp_gt_u32 vcc, v{vCNT}, v{vFL}","valu",[f"v{vCNT}",f"v{vFL}"],[]),1,max(r,B[t]-C.fc),max(r,B[t]-C.fc),max(r,B[t]-C.fc),[(w,0)])
    w=T(salu(f"s_cbranch_vccnz L_r{t}\nL_b{t}:"),0,B[t],B[t],B[t],[(w,1)],-2); cmpw.update((B[t]-1,B[t]))
    pc_=T(valu("v_add_u32",f"v{vCNT}","1",f"v{vCNT}"),1,B[t],B[t]+4,B[t]+1 if t+1<NS and AR[t+1]<B[t]+12 else B[t]+10,[(w,0)])
    stubs.append(f"L_r{t}:\nds_read_b32 v{vFL}, v{vFR}\ns_waitcnt lgkmcnt(0)\nv_cmp_gt_u32 vcc, v{vCNT}, v{vFL}\ns_cbranch_vccnz L_r{t}\ns_branch L_b{t}")
def pfetch(first):
    L=[] if first else [(Ins(f"v_add_co_u32 v{vPF}, s[86:87], s88, v{vPF}","valu",[f"v{vPF}"],[f"v{vPF}"],wsgpr=1),1),(Ins(f"v_addc_co_u32 v{vPF+1}, s[86:87], 0, v{vPF+1}, s[86:87]","valu",[f"v{vPF+1}"],[f"v{vPF+1}"]),1)]
    return L+[(Ins(f"global_load_ubyte a232, v[{vPF}:{vPF+1}], off","vmem",regs("v",vPF,2),[]),2)]
if C.pf:
    pp=None
    for t in C.pfx:
        c=chain(pfetch(0),B[t]-10,B[t]-10,B[t],B[t]+8,[(pp,1)] if pp else []); c[1].deps=[(c[0],1)]; pp=c[-1]; pp.rel=pp.pd=B[t]+5
def drop(f):
    global tasks
    dead=[x for x in tasks if f(x)]; ds_=set(id(x) for x in dead); tasks=[x for x in tasks if id(x) not in ds_]
    for x in tasks: x.deps=[d for d in x.deps if id(d[0]) not in ds_]
if 'd' in C.abl: drop(lambda x:any(i.meta.get('dma') for i in x.ins))
if 'b' in C.abl: drop(lambda x:x.ins[0].k=='bar')
for x in tasks:
    if x.ins[0].k=='bar':
        if 'B' in C.abl: x.ins[0].t="s_nop 0"
        if 'W' in C.abl: x.ins[0].meta["vm_tags"]=set()
if 'p' in C.abl: drop(lambda x:any(x in PS[j] for j in PS))
if 'q' in C.abl: drop(lambda x:'buffer_load' in x.ins[-1].t)
if 's' in C.abl: drop(lambda x:'buffer_store' in x.ins[-1].t)
if 'f' in C.abl: drop(lambda x:any(k in x.ins[0].t for k in (f"v{vCNT}",f"v{vFL}","L_r"))); stubs=[]
if 'F' in C.abl: drop(lambda x:"L_r" in x.ins[0].t); stubs=[]
if 'G' in C.abl: drop(lambda x:any(k in x.ins[0].t for k in (f"v{vFL}","L_r"))); stubs=[]
if 'e' in C.abl: drop(lambda x:'v_exp' in x.ins[0].t)
if 'c' in C.abl: drop(lambda x:'v_cvt_pk' in x.ins[0].t)
if 'm' in C.abl: drop(lambda x:x.soft==3 or 'v_add_f32' in x.ins[0].t)
if 'k' in C.abl: drop(lambda x:'ds_read_b128' in x.ins[0].t)
if 'v' in C.abl: drop(lambda x:'ds_read_b64' in x.ins[0].t)
if 'n' in C.abl: drop(lambda x:x in NT)
gaps=[[] for _ in range(TAIL+1)]; used=[0]*(TAIL+1); forced=set(); sused=[0]*(TAIL+1)
def place(x,g,fo=False):
    for d,dist in x.deps:
        if d.gap is None: assert fo; place(d,g,True)
        if d.gap==g and x.cls<d.cls: forced.add(g)
    assert x.rel-x.soft<=g,(x.ins[0].t,x.rel,g)
    x.gap=g; gaps[g].append(x); used[g]+=x.cost
    if x.cls==-2:
        used[g]+=sused[g]>0; sused[g]+=1
pend=sorted(tasks,key=lambda x:(x.rel,x.id)); act=[]; pi=0
for g in range(TAIL+1):
    while pi<len(pend) and min(pend[pi].rel,pend[pi].hd)<=g: act.append(pend[pi]); pi+=1
    for x in sorted([x for x in tasks if x.gap is None and x.hd<=g],key=lambda x:(x.cls>=0,x.id)):
        if x.gap is None: place(x,g,True)
    if not sused[g]:
        rs=sorted([x for x in act if x.gap is None and x.cls==-2 and x.rel<=g and all(d.gap is not None and d.gap+dist<=g for d,dist in x.deps)],key=lambda x:(x.pd,x.id))
        if rs: place(rs[0],g)
    while used[g]<2:
        act=[x for x in act if x.gap is None]
        rd=sorted([x for x in act if x.rel<=g and all(d.gap is not None and d.gap+dist<=g for d,dist in x.deps)],key=lambda x:(x.pd,x.id))
        rd=[x for x in rd if x.cost<=2-used[g] and x.cls!=-2]
        if not rd: break
        x=rd[0]
        if used[g]==0 and x.cost==1:
            more=any(y.cost==1 for y in rd[1:]) or any(y.cost==1 and y.rel<=g and any(d is x and dist==0 for d,dist in y.deps) and all(d is x or (d.gap is not None and d.gap+dist<=g) for d,dist in y.deps) for y in act)
            two=[y for y in rd if y.cost==2]
            if not more and two and x.hd>g+1: x=two[0]
        place(x,g)
    while C.cap>used[g]:
        rd=sorted([x for x in act if x.gap is None and x.rel<=g and x.pd+C.late<=g and x.cls!=-2 and x.cost<=C.cap-used[g] and all(d.gap is not None and d.gap+dist<=g for d,dist in x.deps)],key=lambda x:(x.pd,x.id))
        if not rd: break
        place(rd[0],g)
assert all(x.gap is not None for x in tasks)
over=sum(max(0,used[g]-2) for g in range(NG)); idle=sum(max(0,2-used[g]) for g in range(NG))
L=[]
def S_(txt):
    for l in txt.strip().split("\n"): L.append(salu(l.strip()))
def V_(op,d,*s,**m): L.append(valu(op,d,*s,**m))
nst=[0]
nd=[0]
def stamp():
    if C.diag>=0:
        if nd[0]==0: L.append(Ins('s_memrealtime s[46:47]\ns_memtime s[50:51]','salu'))
        if nd[0]==C.diag: L.append(Ins('s_memrealtime s[48:49]','salu')); L.append(Ins('s_waitcnt lgkmcnt(0)','wait'))
        nd[0]+=1
    if C.stamps and C.cyc==2:
        L.append(Ins("s_memtime s[98:99]\ns_memrealtime s[100:101]","salu")); L.append(Ins("s_waitcnt lgkmcnt(0)","wait")); L.append(Ins(f"v_writelane_b32 v{vST}, s100, {nst[0]}\nv_writelane_b32 v{vST}, s98, {32+nst[0]}","valu")); nst[0]+=1
    elif C.stamps and nst[0]<28:
        L.append(Ins(("s_memtime" if C.cyc else "s_memrealtime")+" s[98:99]","salu")); L.append(Ins("s_waitcnt lgkmcnt(0)","wait")); L.append(Ins(f"v_writelane_b32 v{vST}, s98, {nst[0]}","valu")); nst[0]+=1
S_(f"s_cmp_ge_u32 s2, {0 if C.empty else 256}\ns_cbranch_scc1 L_end\ns_load_dwordx4 s[4:7], s[0:1], 0\ns_load_dwordx4 s[8:11], s[0:1], 16")
if C.stamps: S_("s_memtime s[96:97]\ns_load_dwordx2 s[40:41], s[0:1], 40")
stamp()
W_,I_,G_,X_,Y_,Z_="v16","v17","v18","v19","v20","v21"
V_("v_lshrrev_b32",W_,"6","v0"); V_("v_and_b32",I_,"15","v0"); V_("v_bfe_u32",G_,"v0","4","2")
L.append(Ins(f"v_readfirstlane_b32 s28, {W_}","valu",[W_],[],rfl=1,wsgpr=1))
V_("v_lshlrev_b32","v22","8",I_); V_("v_lshl_add_u32",f"v{vQ}",G_,"4","v22")
S_("""s_and_b32 s3, s2, 7
s_lshr_b32 s42, s2, 3
s_lshl_b32 s3, s3, 5
s_add_u32 s3, s3, s42
s_lshr_b32 s42, s3, 2
s_lshl_b32 s42, s42, 17
s_lshl_b32 s31, s3, 17
s_lshl_b32 s43, s28, 12
s_add_u32 s31, s31, s43
s_lshl_b32 s29, s28, 10""")
S_(f"s_mul_i32 s30, s28, {2*VB}\ns_mov_b32 s14, 0x2000000\ns_mov_b32 s15, 0x20000\ns_mov_b32 s18, 0x2000000\ns_mov_b32 s19, 0x20000")
for j in range(8): S_(f"s_add_u32 s{60+j}, s31, {j*16384}")
V_("v_lshl_add_u32",X_,W_,"2",G_); V_("v_xor_b32",Y_,I_,X_); V_("v_lshlrev_b32",X_,"8",X_)
V_("v_lshl_add_u32",f"v{vDK}",Y_,"4",X_); V_("v_add_u32",f"v{vDK+1}","0x1000",f"v{vDK}")
V_("v_lshlrev_b32",X_,"2",G_); V_("v_xor_b32",X_,I_,X_); V_("v_lshlrev_b32",X_,"4",X_)
V_("v_lshl_add_u32",X_,G_,"8",X_); V_("v_lshl_add_u32",f"v{vDV}",W_,"11",X_)
if C.pf:
    if C.pfm:
        n=128*(len(C.pfx)+1)*C.pfm
        S_(f"s_getpc_b64 s[44:45]\nL_pc:\ns_mov_b32 s88, ((L_slow-L_pc+{n-1})/{n})*{128*C.pfm}\ns_lshr_b32 s46, s2, 3\ns_lshl_b32 s46, s46, 2\ns_add_u32 s46, s46, s28\ns_mul_i32 s46, s46, {C.pfm}")
        V_("v_and_b32",f"v{vPF}",str(C.pfm-1),"v0"); V_("v_add_u32",f"v{vPF}","s46",f"v{vPF}")
        V_("v_mul_u32_u24",f"v{vPF}",f"(L_slow-L_pc+{n-1})/{n}",f"v{vPF}"); V_("v_mov_b32",f"v{vPF+1}","s45")
    else:
        S_("s_getpc_b64 s[44:45]\nL_pc:\ns_mov_b32 s88, ((L_slow-L_pc+1023)>>10)<<8")
        V_("v_mul_u32_u24",f"v{vPF}","(L_slow-L_pc+1023)>>10","v0"); V_("v_mov_b32",f"v{vPF+1}","s45")
    L.append(Ins(f"v_add_co_u32 v{vPF}, vcc, s44, v{vPF}\ns_nop 1\nv_addc_co_u32 v{vPF+1}, vcc, 0, v{vPF+1}, vcc","valu",[],[]))
if C.pf<0: L.append(pfetch(1)[0][0])
L.append(Ins("s_waitcnt lgkmcnt(0)","wait"))
S_("""s_mov_b32 s12, s4
s_mov_b32 s13, s5
s_add_u32 s20, s6, s42
s_addc_u32 s21, s7, 0
s_add_u32 s22, s8, s42
s_addc_u32 s23, s9, 0""")
pl=[]; cur=[]
for i in proloads:
    cur.append(i)
    if i.k=="vmem": pl.append(cur); cur=[]
if C.pf>0: pl.insert(C.pf,[pfetch(1)[0][0]])
if C.probe:
    pq=[l for need,rel,look,il,key in loads if rel<0 and key[0] in C.probe for l in il][:C.pn]
    print("probe:"," ".join(key for need,rel,look,il,key in loads if rel<0 and key[0] in C.probe),file=sys.stderr)
    for i,x in enumerate(pq):
        L+=x
        if i%12==11: stamp()
    for n in range(len(pq)-4,-1,-4): L.append(Ins(f"s_waitcnt vmcnt({n})","wait")); stamp()
    L.append(salu("s_mov_b64 s[38:39], 0\ns_branch L_fin"))
if C.probe: C.stamps=0
for x in pl[:C.nA]: L+=x
pl=pl[C.nA:]
S_(f"s_mov_b32 s16, s10\ns_mov_b32 s17, s11\ns_mov_b32 s34, {CSC:#x}\ns_mov_b32 s35, 0xffff0000\ns_mov_b32 s36, {(127-C.zr)<<23 if C.z else C.thr:#x}\ns_mov_b32 s33, {(2*C.zr)<<23:#x}\ns_mov_b32 s37, {CSC|0x80000000:#x}\ns_mov_b64 s[38:39], {-1 if C.force_slow else 0}")
for ks in range(4):
    V_("v_add_u32",X_,str(4*ks),G_); V_("v_xor_b32",X_,I_,X_); V_("v_lshl_add_u32",f"v{vK+ks}",X_,"4","v22")
V_("v_bfe_u32",X_,"v0","2","2"); V_("v_and_b32",Y_,"3","v0"); V_("v_mul_u32_u24",Z_,str(VB),G_)
V_("v_lshl_add_u32",Z_,X_,"8",Z_); V_("v_lshl_add_u32",Z_,Y_,"4",Z_); V_("v_add_u32",Z_,hex(VWIN),Z_)
V_("v_mul_u32_u24",f"v{vFR}","0x104",Y_); V_("v_add_u32",f"v{vFR}",hex(FLB),f"v{vFR}")
for n in range(4):
    V_("v_xor_b32",Y_,str(n),X_); V_("v_lshl_add_u32",f"v{vV+n}",Y_,"6",Z_)
V_("v_mov_b32",X_,"0x3f803f80")
if C.one4: V_("v_and_b32",Y_,"3","v0"); L.append(Ins(f"v_cmp_eq_u32 vcc, 0, {Y_}\ns_nop 1\nv_cndmask_b32 {X_}, 0, {X_}, vcc","valu",[Y_,X_],[X_]))
for i in range(4): V_("v_accvgpr_write_b32",f"a{aONE+i}",X_)
V_("v_lshlrev_b32","v0","2","v0"); V_("v_add_u32","v0",hex(FLB),"v0"); V_("v_mov_b32",f"v{vCNT}","0")
L.append(Ins(f"ds_write_b32 v{vFW}, v{vCNT}","ds",[f"v{vFW}",f"v{vCNT}"],[],tag="fi")); V_("v_mov_b32",f"v{vCNT}","1")
ps=prescale(0) if PRE else []
npl=len(pl)
for q4 in range(4):
    if q4==3:
        stamp(); L.append(Ins("s_barrier","bar",vm_tags={"K0"},ds_tags={"fi"})); L+=[kread(0,f) for f in range(8)]
    L+=ps[24*q4:24*q4+24]
    for x in pl[npl*q4//4:npl*(q4+1)//4]: L+=x
if C.b0<0: L.append(Ins("s_barrier","bar",vm_tags=bar[0]["vm"],ds_tags=set()))
stamp()
stg={qk[first[t]][0] for t in range(NS) if t%C.stev==0 and t>0}
for g in range(TAIL+1):
    if g in stg: stamp()
    if g<NG: L.append(M[g])
    xs=gaps[g] if g in forced or g>=NG else sorted(gaps[g],key=lambda x:x.cls+(C.eord*0.5 if x.hd==x.rel and x.ins[0].k=='trans' else 0))
    post=[]
    if C.stt and g in (NG-17,NG-9,NG): stamp()
    for x in xs:
        L+=x.ins
        if C.stt and g>=NG-C.stt and x.ins[-1].meta.get("store"): stamp()
L=waits(L)
L,nn=hazards(L)
body=[i.t for i in L]
if C.probe: body.append("L_fin:"); C.stamps=1
if C.stamps:
    tm="s_memtime" if C.cyc==1 else "s_memrealtime"
    body.append(f"{tm} s[90:91]\ns_waitcnt vmcnt(0)\n{tm} s[100:101]\ns_memtime s[98:99]\ns_waitcnt lgkmcnt(0)")
    for i in range(nst[0],29): body.append(f"v_writelane_b32 v{vST}, s90, {i}")
    body.append(f"v_writelane_b32 v{vST}, s100, 29\nv_writelane_b32 v{vST}, s96, 30\nv_writelane_b32 v{vST}, s98, 31")
    body.append("s_mov_b32 s42, 0x10000000\ns_mov_b32 s43, 0x20000\ns_lshl_b32 s3, s2, 2\ns_add_u32 s3, s3, s28\ns_lshl_b32 s3, s3, 8\nv_mbcnt_lo_u32_b32 v88, -1, 0\nv_mbcnt_hi_u32_b32 v88, -1, v88\nv_lshlrev_b32 v88, 2, v88")
    body.append(f"buffer_store_dword v{vST}, v88, s[40:43], s3 offen")
for j in range(0 if C.probe else 8): body.append(f"s_or_b64 s[38:39], s[38:39], s[{70+2*j}:{71+2*j}]")
if C.diag>=0:
    if C.diag==98: body.append("s_waitcnt vmcnt(0)\ns_memrealtime s[48:49]\ns_waitcnt lgkmcnt(0)")
    if C.diag==99: body.append("s_waitcnt vmcnt(0)\ns_memtime s[48:49]\ns_waitcnt lgkmcnt(0)\ns_sub_u32 s48, s48, s50\ns_lshr_b32 s48, s48, 5\ns_add_u32 s48, s48, s46")
    body.append("s_sub_u32 s48, s48, s46\ns_mul_i32 s48, s48, 4\ns_add_u32 s48, s48, 6000\nL_spin:\ns_memrealtime s[52:53]\ns_waitcnt lgkmcnt(0)\ns_sub_u32 s52, s52, s46\ns_cmp_lt_u32 s52, s48\ns_cbranch_scc1 L_spin")
body.append("s_cmp_eq_u64 s[38:39], 0\ns_cbranch_scc1 L_end")
def slow():
    X=["L_slow:"]; A=X.append; nop="s_nop 7\ns_nop 1"
    A("s_waitcnt vmcnt(0) lgkmcnt(0)\ns_barrier\ns_mul_i32 s46, s28, 40960\ns_lshl_b32 s47, s28, 11")
    A(f"s_sub_u32 s48, s46, {VWIN}\nv_subrev_u32 v{vDV}, s47, v{vDV}\nv_add_u32 v{vDK}, 0x1000, v{vQ}")
    for n in range(4): A(f"v_add_u32 v{vV+n}, s48, v{vV+n}")
    A("s_mov_b32 s44, 0\nL_sj:\ns_lshl_b32 s32, s44, 14\ns_add_u32 s32, s32, s31")
    for ks in range(4): A(f"buffer_load_dwordx4 a[{aQ+4*ks}:{aQ+4*ks+3}], v{vQ}, s[12:15], s32 offen offset:{64*ks}")
    def kq():
        for f in range(8): A(f"global_load_dwordx4 a[{4*f}:{4*f+3}], v{vQ if f<4 else vDK}, s[24:25] offset:{64*(f&3)}")
    def qkm():
        for f in range(8):
            d=R("v",SB+4*(f>>2),4); A(mfma(d,R("a",4*f,4),R("a",aQ+4*(f&3),4),d if f&3 else "0").t)
        A(nop)
    adv="s_add_u32 s24, s24, 8192\ns_addc_u32 s25, s25, 0\ns_add_u32 s45, s45, 1\ns_cmp_lt_u32 s45, 16"
    A(f"v_mov_b32 v{TM}, 0xff800000\ns_mov_b64 s[24:25], s[20:21]\ns_mov_b32 s45, 0\nL_s1:")
    kq(); A("s_waitcnt vmcnt(0)"); qkm()
    for i in range(4): A(f"v_max3_f32 v{TM}, v{TM}, v{SB+2*i}, v{SB+2*i+1}")
    A(adv+"\ns_cbranch_scc1 L_s1")
    for p in ("32","16"): A(f"v_mov_b32 v{TM2}, v{TM}\ns_nop 1\nv_permlane{p}_swap_b32 v{TM}, v{TM2}\ns_nop 1\nv_max_f32 v{TM}, v{TM2}, v{TM}")
    A(f"v_mul_f32 v{TM}, s37, v{TM}")
    for i in range(32): A(f"v_mov_b32 v{OB+i}, 0")
    for i in range(4): A(f"v_accvgpr_write_b32 a{aL+i}, 0")
    A("s_mov_b64 s[24:25], s[20:21]\ns_mov_b64 s[26:27], s[22:23]\ns_mov_b32 s45, 0\nL_s2:")
    kq()
    for bi in range(8):
        A(f"s_add_u32 m0, s46, {bi*VB-(bi&3)*1024}\ns_nop 0\nglobal_load_lds_dwordx4 v{vDV}, s[26:27] offset:{(bi&3)*1024}")
        if bi&3==3: A("s_add_u32 s26, s26, 4096\ns_addc_u32 s27, s27, 0")
    A("s_waitcnt vmcnt(0)")
    for db in range(8):
        for h in range(2): A(f"ds_read_b64_tr_b16 a[{aV+4*db+2*h}:{aV+4*db+2*h+1}], v{vV+(db>>1)} offset:{h*4*VB+8*(db&1)}")
    qkm()
    for e in range(8): A(f"v_fma_f32 v{SB+e}, v{SB+e}, s34, v{TM}")
    for e in range(8): A(f"v_exp_f32 v{SB+e}, v{SB+e}")
    A("s_nop 0")
    for c in range(4): A(f"v_cvt_pk_bf16_f32 v{PB+c}, v{SB+2*c}, v{SB+2*c+1}")
    A("s_waitcnt lgkmcnt(0)\ns_nop 1")
    for db in range(8): A(mfma(R("v",OB+4*db,4),R("a",aV+4*db,4),R("v",PB,4),R("v",OB+4*db,4)).t)
    A(mfma(R("a",aL,4),R("a",aONE,4),R("v",PB,4),R("a",aL,4)).t)
    A(nop+"\n"+adv+"\ns_cbranch_scc1 L_s2")
    A(f"v_accvgpr_read_b32 v{RL}, a{aL}\nv_rcp_f32 v{RR}, v{RL}\ns_nop 0")
    for i in range(32): A(f"v_mul_f32 v{OB+i}, v{RR}, v{OB+i}")
    for i in range(16): A(f"v_cvt_pk_bf16_f32 v{STG+i}, v{OB+2*i}, v{OB+2*i+1}")
    for n in range(4): A(f"buffer_store_dwordx4 v[{STG+4*n}:{STG+4*n+3}], v{vQ}, s[16:19], s32 offen offset:{64*n}")
    A("s_waitcnt vmcnt(0)\ns_add_u32 s44, s44, 1\ns_cmp_lt_u32 s44, 8\ns_cbranch_scc1 L_sj")
    return X
body+=slow(); body.append("s_branch L_end"); body+=stubs; body.append("L_end:")
hdr=open("standalone__gqa_softmax__near_ridge.s.ref").read().split("; Override")[0]
txt=hdr+f"""; @launch grid=(256,1,1) block=(256,1,1) lds=163840
; Generated by a hand-written scheduler script. One workgroup per (batch, q head), one wave per SIMD.
; S^T = K Q^T and O^T = V^T P^T with 16x16x32 bf16 MFMA; row sums by an MFMA with a ones operand.
; Softmax shift stand-in is 0, checked at run time: a row sum outside [2^-40, 2^40] (or NaN) sends the wave to the
; exact path at the end (true row max, then the same computation), which rewrites its rows.
.amdgcn_target "amdgcn-amd-amdhsa--gfx950"
.text
.globl {KN}
.p2align 8
.type {KN},@function
{KN}:
"""+"\n".join(body)+f"""
s_endpgm
.section .rodata,"a"
.p2align 6
.amdhsa_kernel {KN}
  .amdhsa_next_free_vgpr 512
  .amdhsa_next_free_sgpr 102
  .amdhsa_accum_offset 256
  .amdhsa_group_segment_fixed_size 0
  .amdhsa_kernarg_size 48
  .amdhsa_user_sgpr_count 2
  .amdhsa_user_sgpr_kernarg_segment_ptr 1
  .amdhsa_system_sgpr_workgroup_id_x 1
.end_amdhsa_kernel
"""
open(sys.argv[1],"w").write(txt)
print('model/step:',' '.join(str(sum(16+4*max(0,used[g]-2) for g in range(qk[first[t]][0],qk[first[t+C.stev]][0]))) for t in range(0,NS-C.stev,C.stev)),file=sys.stderr)
from collections import Counter
print(f"NS={NS} gaps={NG} over={over} idle={idle} nops={nn} est_cyc={NG*16+over*4} forced={len(forced)} proloads={sum(i.k=='vmem' for i in proloads)}",dict(Counter(i.k for i in L)))
if C.dbg:
    ev=[]
    for x in tasks:
        i=x.ins[-1]
        if i.k=="vmem": ev.append((x.gap,i.meta.get("tag") or i.t[7:12]+i.t.split(", ")[-1][:3]))
        if i.meta.get("vm_tags") is not None: ev.append((x.gap,"WAIT:"+",".join(sorted(i.meta["vm_tags"]))))
    for s in range(NS): ev.append((B[s],f"\nB{s}")); ev.append((VR[s][0].gap,f"rV{s}[")); ev.append((VR[s][-1].gap,f"rV{s}]"))
    for j in PS: ev.append((PS[j][0].gap,f"ps{j}[")); ev.append((PS[j][-1].gap,f"ps{j}]"))
    print(" ".join(f"{n}@{g}" for g,n in sorted(ev)))
```

```python
import re
class Ins:
    __slots__=("t","k","rd","wr","meta")
    def __init__(s,t,k,rd=(),wr=(),**meta):
        s.t=t; s.k=k; s.rd=set(rd); s.wr=set(wr); s.meta=meta
def R(p,b,n=1): return f"{p}{b}" if n==1 else f"{p}[{b}:{b+n-1}]"
def regs(p,b,n=1): return [f"{p}{i}" for i in range(b,b+n)]
def opregs(op):
    m=re.fullmatch(r"-?([va])(\d+)",op)
    if m: return [m.group(1)+m.group(2)]
    m=re.fullmatch(r"([va])\[(\d+):(\d+)\]",op)
    if m: return regs(m.group(1),int(m.group(2)),int(m.group(3))-int(m.group(2))+1)
    return []
def mfma(d,a,b,c,**meta):
    return Ins(f"v_mfma_f32_16x16x32_bf16 {d}, {a}, {b}, {c}","mfma",opregs(a)+opregs(b)+opregs(c),opregs(d),c=set(opregs(c)),d=d,cs=c,**meta)
def valu(op,d,*src,**meta):
    k="trans" if op in("v_exp_f32","v_rcp_f32") else ("perm" if op.startswith("v_permlane") else "valu")
    rd=[r for s in src for r in opregs(s)]; wr=opregs(d)
    if k=="perm": rd+=wr; wr=list(rd)
    return Ins(f"{op} {d}, "+", ".join(src),k,rd,wr,**meta)
def salu(t,**meta): return Ins(t,"salu",**meta)
def isv(i): return i.k in("valu","trans","perm")
def hazards(L):
    out=[]; nn=0
    def states(i):
        if i.k=="nop": return i.meta["n"]
        if i.k in("label","wait"): return 0
        return 1
    for ins in L:
        need=0; dist=0
        for p in reversed(out[-24:]):
            req=0
            if p.k=="mfma":
                if ins.k=="mfma":
                    ab=ins.rd-ins.meta["c"] if ins.meta["cs"]==p.meta["d"] else ins.rd
                    if p.wr&ab: req=8
                    elif p.wr&ins.wr and ins.meta["cs"]!=p.meta["d"]: req=8
                elif p.wr&(ins.rd|ins.wr): req=8
                if isv(ins) and p.meta["c"]&ins.wr: req=max(req,3)
            if isv(p):
                if ins.k in("mfma","perm") and p.wr&ins.rd: req=2
                if p.k=="trans" and p.wr&ins.rd: req=max(req,1)
                if p.meta.get("wsgpr") and ins.k in("vmem",) : req=max(req,5)
                if p.meta.get("wsgpr") and isv(ins): req=max(req,2)
                if ins.meta.get("rfl") and p.wr&ins.rd: req=max(req,1)
            if p.k=="vmem" and p.meta.get("store") and p.meta["data"]&ins.wr: req=2
            if p.k=="salu" and p.meta.get("m0") and ins.meta.get("dma"): req=1
            need=max(need,req-dist)
            dist+=states(p)
        if need>0:
            out.append(Ins(f"s_nop {need-1}","nop",n=need)); nn+=1
        out.append(ins)
    return out,nn
def waits(L, group=3, age=6):
    out=[]; ds=[]; vm=[]
    gi=0
    for ins in L:
        if ins.k=="mfma": gi+=1
        touch=ins.rd|ins.wr
        nd=None; nv=None
        for i,(p,g) in enumerate(ds):
            if p.wr&touch or p.meta.get("tag") in ins.meta.get("ds_tags",()): nd=i
        for i,(p,g) in enumerate(vm):
            if p.wr&touch or p.meta.get("tag") in ins.meta.get("vm_tags",()): nv=i
        w=[]
        if nv is not None:
            n=len(vm)-1-nv; assert n<=63 or True
            w.append(f"vmcnt({min(n,63)})"); vm=vm[nv+1:] if n<=63 else vm[len(vm)-63:]
        if nd is not None:
            k=0
            while k<group and nd+1<len(ds) and ds[nd+1][1]<=gi-age: nd+=1; k+=1
            n=len(ds)-1-nd
            w.append(f"lgkmcnt({min(n,15)})"); ds=ds[nd+1:] if n<=15 else ds[len(ds)-15:]
        if w: out.append(Ins("s_waitcnt "+" ".join(w),"wait"))
        out.append(ins)
        if ins.k=="ds": ds.append((ins,gi))
        if ins.k=="vmem": vm.append((ins,gi))
        if ins.meta.get("drain"): ds=[]; vm=[]
    return out

def hoist(L):
    out=[]
    for n,ins in enumerate(L):
        if ins.k=="wait" and n+1<len(L) and L[n+1].k=="mfma":
            i=len(out)
            while i>0 and out[i-1].k in("valu","trans") and len(out)-i<3: i-=1
            if out[i-1].k in("mfma","ds"): out.insert(i,ins); continue
        out.append(ins)
    return out
```

```python
import sys, json, struct
from asmlib import *
CFG=dict(start=[0,0,3,6,9,17,19,22], mode="pre", vpad=8, gdma=1, lookK=85, lookV=85, lookQ=110, prew=[0,0,60,100,130], stamps=0,
         vearly=[6,5,4,3,2,1,0,5,4,3], thr=0x4e800000, nslow=0, dslead=8, npro=40, force_slow=0, sync='flag', fd=20, cap=3, late=0, one4=1, eearly=100, efix=1, ecost=2, edist=2, eord=0, z=1, zr=40, dbg=0, fmin=14, dl=3, dlj=4, qs=2, fl=0, flstep=1, sal=0, srt=0, nmin=70, fet=12, fde=12, qn=[-3,-1.5], probe=0, pn=48, pfm=1, b0=7, vx=[1,2], pa=0, pz=16, look2=200, lt=[8,41], nw=[[3,22,27],[4,27,32]], sear=10, ns=[17,19,20,22,23,25,27,29,30,32,33,35,36,37], rl=6, lsp=8, dsm=2, dsb=0, dsu=2, wg=16, wa=7, wup=1, fr=7, fc=1, nA=12, pfx=[5,14], flag0=1, abl='_', cyc=0, diag=-1, rq=1, rk=0, stev=2, empty=0, pf=-1, st='_sc0_sc1', st2='_', stn=8, stt=0, nj=5, nhd=30, nspan=150, nb=30, ql='_', kl='_', vl='_', vl2='_')
for a in sys.argv[2:]:
    k,v=a.split("="); CFG[k]=json.loads(v) if v[0] in "[0123456789-" else v
C=type("C",(),CFG)
KN="standalone__gqa_softmax__near_ridge_kernel"
ST=C.st.replace('_',' '); QM=C.ql.replace('_',' '); START=C.start; NS=START[-1]+16; PRE=C.mode=="pre"
VB=1024+C.vpad; VS=8*VB; VWIN=98304
FLB=162816
def vslot(i): return FLB-(i+1)*VS
vK=1; vV=5; vDK=9; vDV=11; vQ=12; PT=(13,14,13,14); vFW=0; vFR=90; vCNT=92; vFL=93; vST=15; vPF=94; STG=16; LAND=32; NEGM=48; SB=64; PB=80; TM=88; TM2=89; RL=91; RR=91; OB=96
aK=0; aV=64; aQ=128; aL=208; aONE=228
CSC=struct.unpack("<I",struct.pack("<f",1.4426950408889634*128**-0.5))[0]
def O(j): return OB+32*(j%5)
def land(j): return {1:O(4),2:O(4)+16}.get(j,LAND+16*(j&1) if C.dl else LAND) if C.dl<3 else 16+16*((j+1)%3)
def RQ(j,ks): return R('v',land(j)+4*ks,4) if C.dl==3 and j>=5 else R('a',aQ+16*(j%5)+4*ks,4)
units=[(t,j) for t in range(NS) for j in range(8) if START[j]<=t<START[j]+16]
nU=len(units); assert nU==128
first={}; last={}; ufirst={}; ulast={}
for u,(t,j) in enumerate(units):
    first.setdefault(t,u); last[t]=u; ufirst.setdefault(j,u); ulast[j]=u
M=[]; qk={}; pv={}; s0={}
for u in range(nU+2):
    s0[u]=len(M)
    if u<nU:
        t,j=units[u]; qk[u]=[]
        for kb in range(2):
            for ks in range(4):
                d=R("v",SB+8*(u&1)+4*kb,4)
                c=d if ks else (R("v",NEGM+4*(j%4),4) if PRE and not C.z and u!=ufirst[j] else "0")
                qk[u].append(len(M)); M.append(mfma(d,R("a",aK+32*(t&1)+16*kb+4*ks,4),RQ(j,ks),c))
    if u>=2:
        x=u-2; t,j=units[x]; pv[x]=[]; p=R("v",PB+4*(x&1),4); f=x==ufirst[j]
        for db in range(8):
            d=R("v",O(j)+4*db,4)
            pv[x].append(len(M)); M.append(mfma(d,R("a",aV+32*(t&1)+4*db,4),p,"0" if f else d))
        d=R("a",aL+4*(j%5),4)
        pv[x].append(len(M)); M.append(mfma(d,R("a",aONE,4),p,"0" if f else d))
NG=len(M); s0[nU+2]=NG; TAIL=NG+400
B={t:qk[first[t]][0] for t in range(NS)}; B[0]=C.b0
FL=lambda t: C.sync=='flag' and t>=C.flag0
AR={t:(max(B[t]-(C.fd if t>C.fet else C.fde),B[t-1]+1) if FL(t) and t>0 else B[t]) for t in range(NS)}
VH={}; SY=[t for t in range(NS) if t not in C.ns]
RP={28+i:C.rl+i for i in range(4)} if C.rl else {}; assert not C.rl or NS<=32+C.rl
KI=lambda t: t if t in RP else t%16
KP=lambda t: RP.get(t,t%16)
for t in range(1,NS):
    h=pv[first[t-1]][7]-C.dslead+1
    if FL(t) and t in SY and AR[t]<h<=B[t]: AR[t]=min(h,B[t]-C.fmin); VH[t-1]=h-AR[t]
class T:
    n=0
    def __init__(s,ins,cost,rel,pd,hd,deps=(),cls=1):
        s.ins=ins if isinstance(ins,list) else [ins]; s.cost=cost; s.rel=rel; s.pd=min(pd,hd); s.hd=hd; s.deps=list(deps); s.cls=cls
        s.soft=0; s.gap=None; s.id=T.n; T.n+=1; tasks.append(s)
tasks=[]
def chain(lst,rel,p0,p1,hd,deps=()):
    prev=None; out=[]
    for i,(ins,cost) in enumerate(lst):
        l=ins if isinstance(ins,list) else [ins]; cls=0 if any(x.k in("vmem","ds") for x in l) else 1
        d=list(deps) if prev is None else [(prev,1 if (cls==0 or prev.ins[-1].k=="trans" or l[0].k=="perm") else 0)]
        prev=T(ins,cost,rel,int(p0+(p1-p0)*i/max(1,len(lst))),hd,d,cls); out.append(prev)
    return out
def maxchain(S,nm):
    v=lambda i:f"v{S+i}"; m=f"v{TM}"; m2=f"v{TM2}"
    L=[(valu("v_max3_f32",m,v(0),v(1),v(2)),1),(valu("v_max3_f32",m,m,v(3),v(4)),1),(valu("v_max3_f32",m,m,v(5),v(6)),1),
       (valu("v_max_f32",m,v(7),m),1),(valu("v_mov_b32",m2,m),1),(valu("v_permlane32_swap_b32",m,m2),2),(valu("v_max_f32",m,m2,m),1),
       (valu("v_mov_b32",m2,m),1),(valu("v_permlane16_swap_b32",m,m2),2),(valu("v_max_f32",m,m2,m),1)]
    L.append((valu("v_sub_f32",f"v{nm}","0",m),1) if PRE else (valu("v_mul_f32",f"v{nm}","s37",m),1))
    return L
for u,(t,j) in enumerate(units):
    S=SB+8*(u&1); P=PB+4*(u&1); nm=NEGM+4*(j%4); a=s0[u+1]; n=s0[u+2]-a
    hdc=[min(qk[u+2][4*(c>>1)]-1 if u+2<nU else TAIL, pv[u][0]-2) for c in range(4)]
    dep0=[]
    if u==ufirst[j] and not C.z:
        r=qk[u][7]+3; ch=chain(maxchain(S,nm),r,r,r+6,hdc[0]-4); dep0=[(ch[-1],0)]
        for x in ch: x.soft=3
        if PRE:
            nu=[x for x in range(u+1,nU) if units[x][1]==j][0]
            for i in range(1,4): T(valu("v_mov_b32",f"v{nm+i}",f"v{nm}"),1,r,r+10,max(qk[nu][0]-2,r-3),dep0).soft=3
            for x in ch: x.hd=min(x.hd,max(qk[nu][0]-2,r-3)); x.pd=min(x.pd,x.hd)
    pe=None; pf=None; ex=[]
    for e in range(8):
        rel=max(qk[u][4*(e>>2)+3]+4,a+(2*e+1)*n//17-C.eearly); pd=a+(2*e+1)*n//17; hd=hdc[e>>1]-1; d=[]
        if not PRE: f=valu("v_fma_f32",f"v{S+e}",f"v{S+e}","s34",f"v{nm}")
        elif u==ufirst[j] and not C.z: f=valu("v_add_f32",f"v{S+e}",f"v{nm}",f"v{S+e}")
        else: f=None
        if f: pf=T(f,1,rel,pd-1,hd,dep0+([(pf,0)] if pf else [])); d.append((pf,0)); pf.soft=4
        if C.efix and PRE and (C.z or u!=ufirst[j]) and rel<=pd<=hd: rel=hd=pd
        pe=T(valu("v_exp_f32",f"v{S+e}",f"v{S+e}"),C.ecost,rel,pd,hd,d+([(pe,C.edist)] if pe else [])); ex.append(pe); pe.soft=4
    for c in range(4):
        T(valu("v_cvt_pk_bf16_f32",f"v{P+c}",f"v{S+2*c}",f"v{S+2*c+1}"),1,pv[u-2][8] if u>=2 else 0,a+(4*c+4)*n//17,hdc[c],[(ex[2*c+1],1)])
bar={t:dict(vm=set(),ds=set(),need=False) for t in range(-1,NS)}
def kread(t,f):
    kt=KP(t); d=aK+32*(t&1)+4*f
    return Ins(f"ds_read_b128 {R('a',d,4)}, v{vK+(f&3)} offset:{(kt&7)*8192+(f>>2)*4096}","ds",[f"v{vK+(f&3)}"],regs("a",d,4),tag=f"rK{t}")
KR={}; prevk=None; Kx={}
for t in range(1,NS):
    KR[t]=[]
    if KI(t)==t: Kx[t]=max(x for x in SY if x<t); bar[Kx[t]]["vm"].add(f"K{t}"); bar[Kx[t]]["need"]=True
    tog=[]
    if KP(t)>>3!=KP(t-1)>>3: tog=[T(valu("v_xor_b32",f"v{vK+i}","0x10000",f"v{vK+i}"),1,0,0,qk[first[t]][0]-C.dslead-1,[(prevk,0)]) for i in range(4)]
    for f in range(8):
        rel=max(qk[last[t-2]][f] if t>=2 else 0, B[Kx[t]]+1 if t in Kx else 0); hd=max(rel,qk[first[t]][f]-C.dslead)
        prevk=T(kread(t,f),1,rel,hd-4,hd,([(prevk,0)] if prevk else [])+[(x,1) for x in tog],0); KR[t].append(prevk)
Vx={}; VR={}; prevv=None; vs={}
ring=0
for s in range(NS):
    Vx[s]=max(x for x in SY if x==0 or pv[first[s]][0]-B[x]>=22)
    if s<len(C.vx): Vx[s]=C.vx[s]
    bar[Vx[s]]["vm"].add(f"V{s}"); bar[Vx[s]]["need"]=True
    if s<len(C.vearly): vs[s]=C.vearly[s]
    elif C.rl:
        def relz(i):
            h=[max(x.hd for x in VR[p]) for p in range(s) if vs[p]==i]+[max(x.hd for x in KR[t]) for t in range(12,16) if t*8192<vslot(i)+VS and vslot(i)<t*8192+8192]
            return min([B[x] for x in SY if AR[x]>max(h)]+[10**6])
        vs[s]=min(range(7),key=relz)
    elif s>=35 and NS>35: vs[s]=[6,5,4,3,vs[32],vs[33],vs[34]][(s-35)%7]
    else: vs[s]=2-ring%3; ring+=1
    VR[s]=[]
    for db in range(8):
        for h in range(2):
            d=aV+32*(s&1)+4*db+2*h; off=vslot(vs[s])-VWIN+h*4*VB+8*(db&1); assert 0<=off<65536
            ins=Ins(f"ds_read_b64_tr_b16 {R('a',d,2)}, v{vV+(db>>1)} offset:{off}","ds",[f"v{vV+(db>>1)}"],regs("a",d,2),tag=f"rV{s}")
            rel=max(pv[last[s-2]][db] if s>=2 else 0,B[Vx[s]]+1); hd=max(rel,pv[first[s]][db]-C.dslead-VH.get(s,0))
            prevv=T(ins,1,rel,hd-8,hd,[(prevv,0)] if prevv else [],0); VR[s].append(prevv)
occ=[]
for t in list(range(16))+list(RP):
    lt=max(x for x in range(NS) if KI(x)==t)
    occ.append((AR[Kx[t]]+t*1e-3 if t else -2,f"K{t}",KP(t)*8192,KP(t)*8192+8192,max(x.hd for x in KR[lt]) if lt else 0,f"rK{lt}"))
for s in range(NS): occ.append((AR[Vx[s]]+0.5+s*1e-3,f"V{s}",vslot(vs[s]),vslot(vs[s])+VS,max(x.hd for x in VR[s]),f"rV{s}"))
def dma(name,h):
    i=int(name[1:]); L=[]
    if name[0]=="K": kt=i%16; sp,sb,m0,va,off=24,20,f"s29, {KP(i)*8192+h*4096}",vDK+h,0
    else: kt=i%16; sp,sb,m0,va,off=26,22,f"s30, {vslot(vs[i])+h*C.vpad}",vDV,1024*h
    if h==0: L+= [salu(f"s_add_u32 s{sp}, s{sb}, {kt*8192}"),salu(f"s_addc_u32 s{sp+1}, s{sb+1}, 0")]
    L.append(salu(f"s_add_u32 m0, {m0}",m0=1))
    L.append(Ins(f"global_load_lds_dwordx4 v{va}, s[{sp}:{sp+1}] offset:{off}"+(C.kl if name[0]=="K" else C.vl if i<16 else C.vl2).replace("_"," "),"vmem",[f"v{va}"],[],dma=1,tag=name))
    return L
def qoff(r,j): return [salu(f's_add_u32 s{r}, s92, {j*16384}'),salu(f's_and_b32 s{r}, s{r}, 0x1ffff'),salu(f's_add_u32 s{r}, s{r}, s31')]
def qload(j,ks):
    d=(R("v",land(j)+4*ks,4) if PRE else R("a",aQ+16*(j%5)+4*ks,4))
    L=[]
    return L+[Ins(f"buffer_load_dwordx4 {d}, v{vQ}, s[12:15], s{60+j} offen offset:{64*ks}{QM}","vmem",[f"v{vQ}"],opregs(d))]
def prescale(j):
    L=[]
    for i in range(16):
        x=f"v{land(j)+i}"; a,b=f"v{PT[2*(i&1)]}",f"v{PT[2*(i&1)+1]}"
        L+=[valu("v_lshlrev_b32",a,"16",x),valu("v_and_b32",b,"s35",x),valu("v_mul_f32",a,"s34",a),valu("v_mul_f32",b,"s34",b),
            valu("v_cvt_pk_bf16_f32",x,a,b)]+([] if C.dl==3 and j>=5 else [valu("v_accvgpr_write_b32",f"a{aQ+16*(j%5)+i}",x)])
    return L
loads=[]
for o in occ:
    fr=-1
    for p in occ:
        if p[0]<o[0] and p[2]<o[3] and o[2]<p[3]:
            y=min(x for x in SY if AR[x]>=p[4]+(1 if FL(x) else 4)); bar[y]["ds"].add(p[5]); bar[y]["need"]=True; fr=max(fr,B[y])
    assert fr<0 or fr<o[0]-20,(o,fr)
    loads.append((o[0],fr+1 if fr>=0 else -10**6,C.look2 if B[C.lt[0]]<o[0]<B[min(C.lt[1],NS-1)] else C.lookK if o[1][0]=="K" else C.lookV,[dma(o[1],h) for h in range(2)],o[1]))
pw={}
for j in range(8):
    e=qk[ufirst[j]][0]-2
    pw[j]=(max(e-(C.prew[min(j,len(C.prew)-1)] if isinstance(C.prew,list) else C.prew),(pw[j-1][1]+ (e-pw[j-1][1])//3) if j else -3),e) if PRE else (e,e)
    if j==0: pw[0]=(-3,-3)
    if C.dl==3:
        if j>=5: a0=pw[4][1]+C.pa; a1=B[C.pz]; pw[j]=(a0+(a1-a0)*(j-5)//3+1,min(e,a0+(a1-a0)*(j-4)//3))
        loads.append((C.qn[j] if j<len(C.qn) else pw[j][0],pw[j-3][1]+4 if j>=3 else -10**6,C.lookQ,[qload(j,ks) for ks in range(4)],f"Q{j}")); continue
    if C.dl and j>=C.dlj: pw[j]=(pw[j-1][1]+1,e)
    rel=-10**6
    if PRE and j>=3: rel=pw[j-1 if j>3 else 0][1]+1
    if C.dl and j>=3: rel=-10**6 if j==3 else pw[j-2 if j>4 else 0][1]+1
    if C.dl and j>=C.dlj:
        t=START[j-1]-C.qs; loads.append((AR[Vx[t+2]]+0.7,max(rel,B[t]+3),10**4,[qload(j,ks) for ks in range(4)],f"Q{j}")); continue
    if not PRE and j>=5: rel=qk[ulast[j-5]][7]
    loads.append((C.qn[j] if j<len(C.qn) else pw[j][0],rel,C.lookQ,[qload(j,ks) for ks in range(4)],f"Q{j}"))
loads.sort(key=lambda x:(max(x[1],x[0]-x[2],0),x[0]) if C.srt else x[0])
lr=0; fh=0; proloads=[]; QL={}; prev=None; inpro=True
for need,rel,look,il,key in loads:
    if inpro and rel<0 and need<=C.npro: proloads+=[i for l in il for i in l]; continue
    inpro=False
    for l in il:
        r=max(rel,int(need)-look,0)
        if need>B[16]: r=max(r,min(lr+C.lsp,int(need)-70)); lr=r
        for i in l:
            sa=i.k=="salu"; dist=0 if (prev is None or (sa and prev.cls==-2) or (not sa and prev.cls==0)) else 1
            if not sa: fh=max(r,fh+C.flstep)
            prev=T(i,0 if sa else 2,max(0,r-4) if sa else r,r,min(max(r,int(need)-1),fh if fh<C.fl and not sa else 10**6),[(prev,dist)] if prev else [],-2 if sa else 0)
    QL[key]=prev
PS={}
for j in range(1,8):
    if PRE:
        rel=max(pw[j][0],qk[ulast[j-5]][7] if j>=5 and C.dl<3 else 0)
        PS[j]=chain([(i,1) for i in prescale(j)],rel,rel,pw[j][1],pw[j][1] if C.dl<3 or j<5 else qk[ufirst[j]][0]-2,([(QL[f"Q{j}"],1)] if f"Q{j}" in QL else [])+([(PS[j-1][-1],0)] if j>1 else []))
def norm(j):
    o=O(j); L=[(valu("v_accvgpr_read_b32",f"v{RL}",f"a{aL+4*(j%5)}"),1),
       (Ins(f"v_cmp_ngt_f32 s[{70+2*j}:{71+2*j}], s36, v{RL}","valu",[f"v{RL}"],[]),1),(valu("v_rcp_f32",f"v{RR}",f"v{RL}"),2)]
    if C.z: L[1:2]=[(valu("v_subrev_u32",f"v{TM}","s36",f"v{RL}"),1),(Ins(f"v_cmp_lt_u32 s[{70+2*j}:{71+2*j}], s33, v{TM}","valu",[f"v{TM}"],[]),1)]
    for n in range(4):
        L+=[(valu("v_mul_f32",f"v{o+8*n+i}",f"v{RR}",f"v{o+8*n+i}"),1) for i in range(8)]
        sg=o+8*n if C.dl==3 else STG+4*n
        L+=[(valu("v_cvt_pk_bf16_f32",f"v{sg+i}",f"v{o+8*n+2*i}",f"v{o+8*n+2*i+1}"),1) for i in range(4)]
        d=regs("v",sg,4)
        L.append(([Ins(f"buffer_store_dwordx4 {R('v',sg,4)}, v{vQ}, s[16:19], s{60+j} offen offset:{64*n}{ST if j<C.stn else C.st2.replace('_',' ')}","vmem",d+[f"v{vQ}"],[],store=1,data=set(d))],2))
    return L
pn=None; NT=[]; p1=0
for j in range(8):
    rel=pv[ulast[j]][8]+4; hd=TAIL
    if j+5<8: hd=pv[ufirst[j+5]][0]-3
    if j+1<8: hd=min(hd,max(pv[ulast[j+1]][8]+3,rel+C.nmin))
    if j>=C.nj: hd=min(hd,rel+C.nhd)
    p0=max(rel,min(p1,hd-40)); p1=min(hd,p0+C.nspan)
    for jj,a,b in C.nw:
        if jj==j: p0=max(rel,B[a]); p1=hd=B[b]
    pn=chain(norm(j),rel,p0-C.nb*(j>=C.nj),p1-C.nb*(j>=C.nj),hd,[(pn[-1],0)] if pn else []); NT+=pn
    if j<C.nj:
        for x in pn:
            if x.ins[0].k=="vmem": x.rel=max(x.rel,x.pd-C.sear)
    if C.sal and j<C.nj:
        E=START[j]+16
        for n,i in enumerate([i for i,x in enumerate(pn) if x.ins[0].k=="vmem"]):
            x=pn[i]; x.rel=B[E+C.sal[n]]+5; x.pd=x.rel; x.hd=x.rel+6
            if i+1<len(pn): pn[i+1].deps=[(pn[i-1],0)]
            for k in range(i):
                if pn[k].ins[0].k!="vmem": pn[k].hd=min(pn[k].hd,x.hd-1); pn[k].pd=min(pn[k].pd,x.hd-1-(i-k))
pc_=None; stubs=[]; cmpw=set()
for t in range(0 if C.b0>=0 else 1,NS):
    if not bar[t]["need"]: continue
    if not FL(t): T(Ins("s_barrier","bar",vm_tags=bar[t]["vm"],ds_tags=bar[t]["ds"]),2,B[t],B[t],B[t],[],-1); continue
    a=AR[t]; r=min(max(a,B[t]-C.fr),B[t]-1)
    w=T(Ins(f"ds_write_b32 v{vFW}, v{vCNT}","ds",[f"v{vFW}",f"v{vCNT}"],[],vm_tags=bar[t]["vm"]),1,a,a,a,[(pc_,1)] if pc_ else [],0)
    w=T(Ins(f"ds_read_b32 v{vFL}, v{vFR}","ds",[f"v{vFR}"],[f"v{vFL}"]),1,r,r,r,[(w,0)],0)
    w=T(Ins(f"v_cmp_gt_u32 vcc, v{vCNT}, v{vFL}","valu",[f"v{vCNT}",f"v{vFL}"],[]),1,max(r,B[t]-C.fc),max(r,B[t]-C.fc),max(r,B[t]-C.fc),[(w,0)])
    w=T(salu(f"s_cbranch_vccnz L_r{t}\nL_b{t}:"),0,B[t],B[t],B[t],[(w,1)],-2); cmpw.update((B[t]-1,B[t]))
    pc_=T(valu("v_add_u32",f"v{vCNT}","1",f"v{vCNT}"),1,B[t],B[t]+4,B[t]+1 if t+1<NS and AR[t+1]<B[t]+12 else B[t]+10,[(w,0)])
    stubs.append(f"L_r{t}:\nds_read_b32 v{vFL}, v{vFR}\ns_waitcnt lgkmcnt(0)\nv_cmp_gt_u32 vcc, v{vCNT}, v{vFL}\ns_cbranch_vccnz L_r{t}\ns_branch L_b{t}")
def pfetch(first):
    L=[] if first else [(Ins(f"v_add_co_u32 v{vPF}, s[86:87], s88, v{vPF}","valu",[f"v{vPF}"],[f"v{vPF}"],wsgpr=1),1),(Ins(f"v_addc_co_u32 v{vPF+1}, s[86:87], 0, v{vPF+1}, s[86:87]","valu",[f"v{vPF+1}"],[f"v{vPF+1}"]),1)]
    return L+[(Ins(f"global_load_ubyte a232, v[{vPF}:{vPF+1}], off","vmem",regs("v",vPF,2),[]),2)]
if C.pf:
    pp=None
    for t in C.pfx:
        c=chain(pfetch(0),B[t]-10,B[t]-10,B[t],B[t]+8,[(pp,1)] if pp else []); c[1].deps=[(c[0],1)]; pp=c[-1]; pp.rel=pp.pd=B[t]+5
def drop(f):
    global tasks
    dead=[x for x in tasks if f(x)]; ds_=set(id(x) for x in dead); tasks=[x for x in tasks if id(x) not in ds_]
    for x in tasks: x.deps=[d for d in x.deps if id(d[0]) not in ds_]
if 'd' in C.abl: drop(lambda x:any(i.meta.get('dma') for i in x.ins))
if 'b' in C.abl: drop(lambda x:x.ins[0].k=='bar')
for x in tasks:
    if x.ins[0].k=='bar':
        if 'B' in C.abl: x.ins[0].t="s_nop 0"
        if 'W' in C.abl: x.ins[0].meta["vm_tags"]=set()
if 'p' in C.abl: drop(lambda x:any(x in PS[j] for j in PS))
if 'q' in C.abl: drop(lambda x:'buffer_load' in x.ins[-1].t)
if 's' in C.abl: drop(lambda x:'buffer_store' in x.ins[-1].t)
if 'f' in C.abl: drop(lambda x:any(k in x.ins[0].t for k in (f"v{vCNT}",f"v{vFL}","L_r"))); stubs=[]
if 'F' in C.abl: drop(lambda x:"L_r" in x.ins[0].t); stubs=[]
if 'G' in C.abl: drop(lambda x:any(k in x.ins[0].t for k in (f"v{vFL}","L_r"))); stubs=[]
if 'e' in C.abl: drop(lambda x:'v_exp' in x.ins[0].t)
if 'c' in C.abl: drop(lambda x:'v_cvt_pk' in x.ins[0].t)
if 'm' in C.abl: drop(lambda x:x.soft==3 or 'v_add_f32' in x.ins[0].t)
if 'k' in C.abl: drop(lambda x:'ds_read_b128' in x.ins[0].t)
if 'v' in C.abl: drop(lambda x:'ds_read_b64' in x.ins[0].t)
if 'n' in C.abl: drop(lambda x:x in NT)
gaps=[[] for _ in range(TAIL+1)]; used=[0]*(TAIL+1); forced=set(); sused=[0]*(TAIL+1)
def place(x,g,fo=False):
    for d,dist in x.deps:
        if d.gap is None: assert fo; place(d,g,True)
        if d.gap==g and x.cls<d.cls: forced.add(g)
    assert x.rel-x.soft<=g,(x.ins[0].t,x.rel,g)
    x.gap=g; gaps[g].append(x); used[g]+=x.cost
    if x.cls==-2:
        used[g]+=sused[g]>0; sused[g]+=1
def dsx(x,g): return x.ins[0].k=='ds' and sum(y.ins[0].k=='ds' for y in gaps[g])>=C.dsm and x.hd-g>C.dsu
for x in tasks:
    if x.ins[0].k=='ds': x.pd-=C.dsb
pend=sorted(tasks,key=lambda x:(x.rel,x.id)); act=[]; pi=0
for g in range(TAIL+1):
    while pi<len(pend) and min(pend[pi].rel,pend[pi].hd)<=g: act.append(pend[pi]); pi+=1
    for x in sorted([x for x in tasks if x.gap is None and x.hd<=g],key=lambda x:(x.cls>=0,x.id)):
        if x.gap is None: place(x,g,True)
    if not sused[g]:
        rs=sorted([x for x in act if x.gap is None and x.cls==-2 and x.rel<=g and all(d.gap is not None and d.gap+dist<=g for d,dist in x.deps)],key=lambda x:(x.pd,x.id))
        if rs: place(rs[0],g)
    while used[g]<2:
        act=[x for x in act if x.gap is None]
        rd=sorted([x for x in act if x.rel<=g and all(d.gap is not None and d.gap+dist<=g for d,dist in x.deps)],key=lambda x:(x.pd,x.id))
        rd=[x for x in rd if x.cost<=2-used[g] and x.cls!=-2 and not dsx(x,g)]
        if not rd: break
        x=rd[0]
        if used[g]==0 and x.cost==1:
            more=any(y.cost==1 for y in rd[1:]) or any(y.cost==1 and y.rel<=g and any(d is x and dist==0 for d,dist in y.deps) and all(d is x or (d.gap is not None and d.gap+dist<=g) for d,dist in y.deps) for y in act)
            two=[y for y in rd if y.cost==2]
            if not more and two and x.hd>g+1: x=two[0]
        place(x,g)
    while C.cap>used[g]:
        rd=sorted([x for x in act if x.gap is None and x.rel<=g and x.pd+C.late+(C.dsb if x.ins[0].k=='ds' else 0)<=g and x.cls!=-2 and not dsx(x,g) and x.cost<=C.cap-used[g] and all(d.gap is not None and d.gap+dist<=g for d,dist in x.deps)],key=lambda x:(x.pd,x.id))
        if not rd: break
        place(rd[0],g)
assert all(x.gap is not None for x in tasks)
over=sum(max(0,used[g]-2) for g in range(NG)); idle=sum(max(0,2-used[g]) for g in range(NG))
L=[]
def S_(txt):
    for l in txt.strip().split("\n"): L.append(salu(l.strip()))
def V_(op,d,*s,**m): L.append(valu(op,d,*s,**m))
nst=[0]
nd=[0]
def stamp():
    if C.diag>=0:
        if nd[0]==0: L.append(Ins('s_memrealtime s[46:47]\ns_memtime s[50:51]','salu'))
        if nd[0]==C.diag: L.append(Ins('s_memrealtime s[48:49]','salu')); L.append(Ins('s_waitcnt lgkmcnt(0)','wait'))
        nd[0]+=1
    if C.stamps and C.cyc==2:
        L.append(Ins("s_memtime s[98:99]\ns_memrealtime s[100:101]","salu")); L.append(Ins("s_waitcnt lgkmcnt(0)","wait")); L.append(Ins(f"v_writelane_b32 v{vST}, s100, {nst[0]}\nv_writelane_b32 v{vST}, s98, {32+nst[0]}","valu")); nst[0]+=1
    elif C.stamps and nst[0]<28:
        L.append(Ins(("s_memtime" if C.cyc else "s_memrealtime")+" s[98:99]","salu")); L.append(Ins("s_waitcnt lgkmcnt(0)","wait")); L.append(Ins(f"v_writelane_b32 v{vST}, s98, {nst[0]}","valu")); nst[0]+=1
S_(f"s_cmp_ge_u32 s2, {0 if C.empty else 256}\ns_cbranch_scc1 L_end\ns_load_dwordx4 s[4:7], s[0:1], 0\ns_load_dwordx4 s[8:11], s[0:1], 16")
if C.stamps: S_("s_memtime s[96:97]\ns_load_dwordx2 s[40:41], s[0:1], 40")
stamp()
W_,I_,G_,X_,Y_,Z_="v64","v65","v66","v67","v68","v69"
V_("v_lshrrev_b32",W_,"6","v0"); V_("v_and_b32",I_,"15","v0"); V_("v_bfe_u32",G_,"v0","4","2")
L.append(Ins(f"v_readfirstlane_b32 s28, {W_}","valu",[W_],[],rfl=1,wsgpr=1))
V_("v_lshlrev_b32","v70","8",I_); V_("v_lshl_add_u32",f"v{vQ}",G_,"4","v70")
S_("""s_and_b32 s3, s2, 7
s_lshr_b32 s42, s2, 3
s_lshl_b32 s3, s3, 5
s_add_u32 s3, s3, s42
s_lshr_b32 s42, s3, 2
s_lshl_b32 s42, s42, 17
s_lshl_b32 s31, s3, 17
s_lshl_b32 s43, s28, 12
s_add_u32 s31, s31, s43
s_lshl_b32 s29, s28, 10""")
S_(f"s_mul_i32 s30, s28, {2*VB}\ns_mov_b32 s14, 0x2000000\ns_mov_b32 s15, 0x20000\ns_mov_b32 s18, 0x2000000\ns_mov_b32 s19, 0x20000")
for j in range(8): S_(f"s_add_u32 s{60+j}, s31, {j*16384}")
V_("v_lshl_add_u32",X_,W_,"2",G_); V_("v_xor_b32",Y_,I_,X_); V_("v_lshlrev_b32",X_,"8",X_)
V_("v_lshl_add_u32",f"v{vDK}",Y_,"4",X_); V_("v_add_u32",f"v{vDK+1}","0x1000",f"v{vDK}")
V_("v_lshlrev_b32",X_,"2",G_); V_("v_xor_b32",X_,I_,X_); V_("v_lshlrev_b32",X_,"4",X_)
V_("v_lshl_add_u32",X_,G_,"8",X_); V_("v_lshl_add_u32",f"v{vDV}",W_,"11",X_)
if C.pf:
    if C.pfm:
        n=128*(len(C.pfx)+1)*C.pfm
        S_(f"s_getpc_b64 s[44:45]\nL_pc:\ns_mov_b32 s88, ((L_slow-L_pc+{n-1})/{n})*{128*C.pfm}\ns_lshr_b32 s46, s2, 3\ns_lshl_b32 s46, s46, 2\ns_add_u32 s46, s46, s28\ns_mul_i32 s46, s46, {C.pfm}")
        V_("v_and_b32",f"v{vPF}",str(C.pfm-1),"v0"); V_("v_add_u32",f"v{vPF}","s46",f"v{vPF}")
        V_("v_mul_u32_u24",f"v{vPF}",f"(L_slow-L_pc+{n-1})/{n}",f"v{vPF}"); V_("v_mov_b32",f"v{vPF+1}","s45")
    else:
        S_("s_getpc_b64 s[44:45]\nL_pc:\ns_mov_b32 s88, ((L_slow-L_pc+1023)>>10)<<8")
        V_("v_mul_u32_u24",f"v{vPF}","(L_slow-L_pc+1023)>>10","v0"); V_("v_mov_b32",f"v{vPF+1}","s45")
    L.append(Ins(f"v_add_co_u32 v{vPF}, vcc, s44, v{vPF}\ns_nop 1\nv_addc_co_u32 v{vPF+1}, vcc, 0, v{vPF+1}, vcc","valu",[],[]))
if C.pf<0: L.append(pfetch(1)[0][0])
L.append(Ins("s_waitcnt lgkmcnt(0)","wait"))
S_("""s_mov_b32 s12, s4
s_mov_b32 s13, s5
s_add_u32 s20, s6, s42
s_addc_u32 s21, s7, 0
s_add_u32 s22, s8, s42
s_addc_u32 s23, s9, 0""")
pl=[]; cur=[]
for i in proloads:
    cur.append(i)
    if i.k=="vmem": pl.append(cur); cur=[]
if C.pf>0: pl.insert(C.pf,[pfetch(1)[0][0]])
if C.probe:
    pq=[l for need,rel,look,il,key in loads if rel<0 and key[0] in C.probe for l in il][:C.pn]
    print("probe:"," ".join(key for need,rel,look,il,key in loads if rel<0 and key[0] in C.probe),file=sys.stderr)
    for i,x in enumerate(pq):
        L+=x
        if i%12==11: stamp()
    for n in range(len(pq)-4,-1,-4): L.append(Ins(f"s_waitcnt vmcnt({n})","wait")); stamp()
    L.append(salu("s_mov_b64 s[38:39], 0\ns_branch L_fin"))
if C.probe: C.stamps=0
for x in pl[:C.nA]: L+=x
pl=pl[C.nA:]
S_(f"s_mov_b32 s16, s10\ns_mov_b32 s17, s11\ns_mov_b32 s34, {CSC:#x}\ns_mov_b32 s35, 0xffff0000\ns_mov_b32 s36, {(127-C.zr)<<23 if C.z else C.thr:#x}\ns_mov_b32 s33, {(2*C.zr)<<23:#x}\ns_mov_b32 s37, {CSC|0x80000000:#x}\ns_mov_b64 s[38:39], {-1 if C.force_slow else 0}")
for ks in range(4):
    V_("v_add_u32",X_,str(4*ks),G_); V_("v_xor_b32",X_,I_,X_); V_("v_lshl_add_u32",f"v{vK+ks}",X_,"4","v70")
V_("v_bfe_u32",X_,"v0","2","2"); V_("v_and_b32",Y_,"3","v0"); V_("v_mul_u32_u24",Z_,str(VB),G_)
V_("v_lshl_add_u32",Z_,X_,"8",Z_); V_("v_lshl_add_u32",Z_,Y_,"4",Z_); V_("v_add_u32",Z_,hex(VWIN),Z_)
V_("v_mul_u32_u24",f"v{vFR}","0x104",Y_); V_("v_add_u32",f"v{vFR}",hex(FLB),f"v{vFR}")
for n in range(4):
    V_("v_xor_b32",Y_,str(n),X_); V_("v_lshl_add_u32",f"v{vV+n}",Y_,"6",Z_)
V_("v_mov_b32",X_,"0x3f803f80")
if C.one4: V_("v_and_b32",Y_,"3","v0"); L.append(Ins(f"v_cmp_eq_u32 vcc, 0, {Y_}\ns_nop 1\nv_cndmask_b32 {X_}, 0, {X_}, vcc","valu",[Y_,X_],[X_]))
for i in range(4): V_("v_accvgpr_write_b32",f"a{aONE+i}",X_)
V_("v_lshlrev_b32","v0","2","v0"); V_("v_add_u32","v0",hex(FLB),"v0"); V_("v_mov_b32",f"v{vCNT}","0")
L.append(Ins(f"ds_write_b32 v{vFW}, v{vCNT}","ds",[f"v{vFW}",f"v{vCNT}"],[],tag="fi")); V_("v_mov_b32",f"v{vCNT}","1")
ps=prescale(0) if PRE else []
npl=len(pl)
for q4 in range(4):
    if q4==3:
        stamp(); L.append(Ins("s_barrier","bar",vm_tags={"K0"},ds_tags={"fi"})); L+=[kread(0,f) for f in range(8)]
    L+=ps[24*q4:24*q4+24]
    for x in pl[npl*q4//4:npl*(q4+1)//4]: L+=x
if C.b0<0: L.append(Ins("s_barrier","bar",vm_tags=bar[0]["vm"],ds_tags=set()))
stamp()
stg={qk[first[t]][0] for t in range(NS) if t%C.stev==0 and t>0}
for g in range(TAIL+1):
    if g in stg: stamp()
    if g<NG: L.append(M[g])
    xs=gaps[g] if g in forced or g>=NG else sorted(gaps[g],key=lambda x:x.cls+(C.eord*0.5 if x.hd==x.rel and x.ins[0].k=='trans' else 0))
    post=[]
    if C.stt and g in (NG-17,NG-9,NG): stamp()
    for x in xs:
        L+=x.ins
        if C.stt and g>=NG-C.stt and x.ins[-1].meta.get("store"): stamp()
L=waits(L,C.wg,C.wa)
if C.wup: L=hoist(L)
L,nn=hazards(L)
body=[i.t for i in L]
if C.probe: body.append("L_fin:"); C.stamps=1
if C.stamps:
    tm="s_memtime" if C.cyc==1 else "s_memrealtime"
    body.append(f"{tm} s[90:91]\ns_waitcnt vmcnt(0)\n{tm} s[100:101]\ns_memtime s[98:99]\ns_waitcnt lgkmcnt(0)")
    for i in range(nst[0],29): body.append(f"v_writelane_b32 v{vST}, s90, {i}")
    body.append(f"v_writelane_b32 v{vST}, s100, 29\nv_writelane_b32 v{vST}, s96, 30\nv_writelane_b32 v{vST}, s98, 31")
    body.append("s_mov_b32 s42, 0x10000000\ns_mov_b32 s43, 0x20000\ns_lshl_b32 s3, s2, 2\ns_add_u32 s3, s3, s28\ns_lshl_b32 s3, s3, 8\nv_mbcnt_lo_u32_b32 v88, -1, 0\nv_mbcnt_hi_u32_b32 v88, -1, v88\nv_lshlrev_b32 v88, 2, v88")
    body.append(f"buffer_store_dword v{vST}, v88, s[40:43], s3 offen")
for j in range(0 if C.probe else 8): body.append(f"s_or_b64 s[38:39], s[38:39], s[{70+2*j}:{71+2*j}]")
if C.diag>=0:
    if C.diag==98: body.append("s_waitcnt vmcnt(0)\ns_memrealtime s[48:49]\ns_waitcnt lgkmcnt(0)")
    if C.diag==99: body.append("s_waitcnt vmcnt(0)\ns_memtime s[48:49]\ns_waitcnt lgkmcnt(0)\ns_sub_u32 s48, s48, s50\ns_lshr_b32 s48, s48, 5\ns_add_u32 s48, s48, s46")
    body.append("s_sub_u32 s48, s48, s46\ns_mul_i32 s48, s48, 4\ns_add_u32 s48, s48, 6000\nL_spin:\ns_memrealtime s[52:53]\ns_waitcnt lgkmcnt(0)\ns_sub_u32 s52, s52, s46\ns_cmp_lt_u32 s52, s48\ns_cbranch_scc1 L_spin")
body.append("s_cmp_eq_u64 s[38:39], 0\ns_cbranch_scc1 L_end")
def slow():
    X=["L_slow:"]; A=X.append; nop="s_nop 7\ns_nop 1"
    A("s_waitcnt vmcnt(0) lgkmcnt(0)\ns_barrier\ns_mul_i32 s46, s28, 40960\ns_lshl_b32 s47, s28, 11")
    A(f"s_sub_u32 s48, s46, {VWIN}\nv_subrev_u32 v{vDV}, s47, v{vDV}\nv_add_u32 v{vDK}, 0x1000, v{vQ}")
    for n in range(4): A(f"v_add_u32 v{vV+n}, s48, v{vV+n}")
    A("s_mov_b32 s44, 0\nL_sj:\ns_lshl_b32 s32, s44, 14\ns_add_u32 s32, s32, s31")
    for ks in range(4): A(f"buffer_load_dwordx4 a[{aQ+4*ks}:{aQ+4*ks+3}], v{vQ}, s[12:15], s32 offen offset:{64*ks}")
    def kq():
        for f in range(8): A(f"global_load_dwordx4 a[{4*f}:{4*f+3}], v{vQ if f<4 else vDK}, s[24:25] offset:{64*(f&3)}")
    def qkm():
        for f in range(8):
            d=R("v",SB+4*(f>>2),4); A(mfma(d,R("a",4*f,4),R("a",aQ+4*(f&3),4),d if f&3 else "0").t)
        A(nop)
    adv="s_add_u32 s24, s24, 8192\ns_addc_u32 s25, s25, 0\ns_add_u32 s45, s45, 1\ns_cmp_lt_u32 s45, 16"
    A(f"v_mov_b32 v{TM}, 0xff800000\ns_mov_b64 s[24:25], s[20:21]\ns_mov_b32 s45, 0\nL_s1:")
    kq(); A("s_waitcnt vmcnt(0)"); qkm()
    for i in range(4): A(f"v_max3_f32 v{TM}, v{TM}, v{SB+2*i}, v{SB+2*i+1}")
    A(adv+"\ns_cbranch_scc1 L_s1")
    for p in ("32","16"): A(f"v_mov_b32 v{TM2}, v{TM}\ns_nop 1\nv_permlane{p}_swap_b32 v{TM}, v{TM2}\ns_nop 1\nv_max_f32 v{TM}, v{TM2}, v{TM}")
    A(f"v_mul_f32 v{TM}, s37, v{TM}")
    for i in range(32): A(f"v_mov_b32 v{OB+i}, 0")
    for i in range(4): A(f"v_accvgpr_write_b32 a{aL+i}, 0")
    A("s_mov_b64 s[24:25], s[20:21]\ns_mov_b64 s[26:27], s[22:23]\ns_mov_b32 s45, 0\nL_s2:")
    kq()
    for bi in range(8):
        A(f"s_add_u32 m0, s46, {bi*VB-(bi&3)*1024}\ns_nop 0\nglobal_load_lds_dwordx4 v{vDV}, s[26:27] offset:{(bi&3)*1024}")
        if bi&3==3: A("s_add_u32 s26, s26, 4096\ns_addc_u32 s27, s27, 0")
    A("s_waitcnt vmcnt(0)")
    for db in range(8):
        for h in range(2): A(f"ds_read_b64_tr_b16 a[{aV+4*db+2*h}:{aV+4*db+2*h+1}], v{vV+(db>>1)} offset:{h*4*VB+8*(db&1)}")
    qkm()
    for e in range(8): A(f"v_fma_f32 v{SB+e}, v{SB+e}, s34, v{TM}")
    for e in range(8): A(f"v_exp_f32 v{SB+e}, v{SB+e}")
    A("s_nop 0")
    for c in range(4): A(f"v_cvt_pk_bf16_f32 v{PB+c}, v{SB+2*c}, v{SB+2*c+1}")
    A("s_waitcnt lgkmcnt(0)\ns_nop 1")
    for db in range(8): A(mfma(R("v",OB+4*db,4),R("a",aV+4*db,4),R("v",PB,4),R("v",OB+4*db,4)).t)
    A(mfma(R("a",aL,4),R("a",aONE,4),R("v",PB,4),R("a",aL,4)).t)
    A(nop+"\n"+adv+"\ns_cbranch_scc1 L_s2")
    A(f"v_accvgpr_read_b32 v{RL}, a{aL}\nv_rcp_f32 v{RR}, v{RL}\ns_nop 0")
    for i in range(32): A(f"v_mul_f32 v{OB+i}, v{RR}, v{OB+i}")
    for i in range(16): A(f"v_cvt_pk_bf16_f32 v{STG+i}, v{OB+2*i}, v{OB+2*i+1}")
    for n in range(4): A(f"buffer_store_dwordx4 v[{STG+4*n}:{STG+4*n+3}], v{vQ}, s[16:19], s32 offen offset:{64*n}")
    A("s_waitcnt vmcnt(0)\ns_add_u32 s44, s44, 1\ns_cmp_lt_u32 s44, 8\ns_cbranch_scc1 L_sj")
    return X
body+=slow(); body.append("s_branch L_end"); body+=stubs; body.append("L_end:")
hdr=open("standalone__gqa_softmax__near_ridge.s.ref").read().split("; Override")[0]
txt=hdr+f"""; @launch grid=(256,1,1) block=(256,1,1) lds=163840
; Generated by a hand-written scheduler script. One workgroup per (batch, q head), one wave per SIMD.
; S^T = K Q^T and O^T = V^T P^T with 16x16x32 bf16 MFMA; row sums by an MFMA with a ones operand.
; Softmax shift stand-in is 0, checked at run time: a row sum outside [2^-40, 2^40] (or NaN) sends the wave to the
; exact path at the end (true row max, then the same computation), which rewrites its rows.
.amdgcn_target "amdgcn-amd-amdhsa--gfx950"
.text
.globl {KN}
.p2align 8
.type {KN},@function
{KN}:
"""+"\n".join(body)+f"""
s_endpgm
.section .rodata,"a"
.p2align 6
.amdhsa_kernel {KN}
  .amdhsa_next_free_vgpr 512
  .amdhsa_next_free_sgpr 102
  .amdhsa_accum_offset 256
  .amdhsa_group_segment_fixed_size 0
  .amdhsa_kernarg_size 48
  .amdhsa_user_sgpr_count 2
  .amdhsa_user_sgpr_kernarg_segment_ptr 1
  .amdhsa_system_sgpr_workgroup_id_x 1
.end_amdhsa_kernel
"""
open(sys.argv[1],"w").write(txt)
print('model/step:',' '.join(str(sum(16+4*max(0,used[g]-2) for g in range(qk[first[t]][0],qk[first[t+C.stev]][0]))) for t in range(0,NS-C.stev,C.stev)),file=sys.stderr)
from collections import Counter
print(f"NS={NS} gaps={NG} over={over} idle={idle} nops={nn} est_cyc={NG*16+over*4} forced={len(forced)} proloads={sum(i.k=='vmem' for i in proloads)}",dict(Counter(i.k for i in L)))
if C.dbg:
    ev=[]
    for x in tasks:
        i=x.ins[-1]
        if i.k=="vmem": ev.append((x.gap,i.meta.get("tag") or i.t[7:12]+i.t.split(", ")[-1][:3]))
        if i.meta.get("vm_tags") is not None: ev.append((x.gap,"WAIT:"+",".join(sorted(i.meta["vm_tags"]))))
    for s in range(NS): ev.append((B[s],f"\nB{s}")); ev.append((VR[s][0].gap,f"rV{s}[")); ev.append((VR[s][-1].gap,f"rV{s}]"))
    for j in PS: ev.append((PS[j][0].gap,f"ps{j}[")); ev.append((PS[j][-1].gap,f"ps{j}]"))
    print(" ".join(f"{n}@{g}" for g,n in sorted(ev)))
```

```python
import sys, json, struct
from asmlib import *
CFG=dict(start=[0,0,3,6,9,17,19,22], mode="pre", vpad=8, gdma=1, lookK=120, lookV=120, lookQ=160, prew=[0,0,60,130,190], stamps=0,
         vearly=[6,5,4,3,2,1,0,5,4,3], thr=0x4e800000, nslow=0, dslead=8, npro=40, force_slow=0, sync='flag', fd=20, cap=3, late=0, one4=1, eearly=100, efix=1, ecost=2, edist=2, eord=0, z=1, zr=40, dbg=0, fmin=14, dl=3, dlj=4, qs=2, fl=0, flstep=1, sal=0, srt=0, nmin=70, fet=12, fde=12, qn=[-3,-1.5], probe=0, pn=48, pfm=1, b0=7, vx=[1,2], pa=0, pz=16, look2=200, lt=[14,41], nw=[[3,22,24],[4,25,32]], sear=10, ns=[17,19,20,22,23,25,27,29,30,32,33,35,36,37], rl=6, lsp=8, dsm=2, dsb=0, dsu=2, wg=16, wa=7, wup=1, stp=0, lmin=0, ksm=0, lf=5, pdv=8, p1=0, bq=1, fr=7, fc=1, nA=12, pfx=[5,14], flag0=1, abl='_', cyc=0, diag=-1, rq=1, rk=0, stev=2, empty=0, pf=-1, st='_sc0_sc1', st2='_', stn=8, stt=0, nj=5, nhd=20, nspan=150, nb=30, ql='_', kl='_', vl='_', vl2='_')
for a in sys.argv[2:]:
    k,v=a.split("="); CFG[k]=json.loads(v) if v[0] in "[0123456789-" else v
C=type("C",(),CFG)
if C.p1: C.b0=-1; C.qn=[-3,-2.5 if C.p1==1 else -1.5]
KN="standalone__gqa_softmax__near_ridge_kernel"
ST=C.st.replace('_',' '); QM=C.ql.replace('_',' '); START=C.start; NS=START[-1]+16; PRE=C.mode=="pre"
VB=1024+C.vpad; VS=8*VB; VWIN=98304
FLB=162816
def vslot(i): return FLB-(i+1)*VS
vK=1; vV=5; vDK=9; vDV=11; vQ=12; PT=(13,14,13,14); vFW=0; vFR=90; vCNT=92; vFL=93; vST=15; vPF=94; STG=16; LAND=32; NEGM=48; SB=64; PB=80; TM=88; TM2=89; RL=91; RR=91; OB=96
aK=0; aV=64; aQ=128; aL=208; aONE=228
CSC=struct.unpack("<I",struct.pack("<f",1.4426950408889634*128**-0.5))[0]
def O(j): return OB+32*(j%5)
def land(j): return {1:O(4),2:O(4)+16}.get(j,LAND+16*(j&1) if C.dl else LAND) if C.dl<3 else 16+16*((j+1)%3)
def RQ(j,ks): return R('v',land(j)+4*ks,4) if C.dl==3 and j>=5 else R('a',aQ+16*(j%5)+4*ks,4)
units=[(t,j) for t in range(NS) for j in range(8) if START[j]<=t<START[j]+16]
nU=len(units); assert nU==128
first={}; last={}; ufirst={}; ulast={}
for u,(t,j) in enumerate(units):
    first.setdefault(t,u); last[t]=u; ufirst.setdefault(j,u); ulast[j]=u
M=[]; qk={}; pv={}; s0={}
for u in range(nU+2):
    s0[u]=len(M)
    if u<nU:
        t,j=units[u]; qk[u]=[0]*8
        for kb,ks in ([(i&1,i>>1) for i in range(8)] if C.ksm else [(i>>2,i&3) for i in range(8)]):
            if 1:
                d=R("v",SB+8*(u&1)+4*kb,4)
                c=d if ks else (R("v",NEGM+4*(j%4),4) if PRE and not C.z and u!=ufirst[j] else "0")
                qk[u][4*kb+ks]=len(M); M.append(mfma(d,R("a",aK+32*(t&1)+16*kb+4*ks,4),RQ(j,ks),c))
    if u>=2:
        x=u-2; t,j=units[x]; pv[x]=[]; p=R("v",PB+4*(x&1),4); f=x==ufirst[j]
        lf=j>=C.lf and x==ulast[j]
        if lf: lg=len(M); d=R("a",aL+4*(j%5),4); M.append(mfma(d,R("a",aONE,4),p,d))
        for db in range(8):
            d=R("v",O(j)+4*db,4)
            pv[x].append(len(M)); M.append(mfma(d,R("a",aV+32*(t&1)+4*db,4),p,"0" if f else d))
        d=R("a",aL+4*(j%5),4)
        if lf: pv[x].append(lg); continue
        pv[x].append(len(M)); M.append(mfma(d,R("a",aONE,4),p,"0" if f else d))
NG=len(M); s0[nU+2]=NG; TAIL=NG+400
B={t:qk[first[t]][0] for t in range(NS)}; B[0]=C.b0
FL=lambda t: C.sync=='flag' and t>=C.flag0
AR={t:(max(B[t]-(C.fd if t>C.fet else C.fde),B[t-1]+1) if FL(t) and t>0 else B[t]) for t in range(NS)}
VH={}; SY=[t for t in range(NS) if t not in C.ns]
RP={28+i:C.rl+i for i in range(4)} if C.rl else {}; assert not C.rl or NS<=32+C.rl
KI=lambda t: t if t in RP else t%16
KP=lambda t: RP.get(t,t%16)
for t in range(1,NS):
    h=pv[first[t-1]][7]-C.dslead+1
    if FL(t) and t in SY and AR[t]<h<=B[t]: AR[t]=min(h,B[t]-C.fmin); VH[t-1]=h-AR[t]
class T:
    n=0
    def __init__(s,ins,cost,rel,pd,hd,deps=(),cls=1):
        s.ins=ins if isinstance(ins,list) else [ins]; s.cost=cost; s.rel=rel; s.pd=min(pd,hd); s.hd=hd; s.deps=list(deps); s.cls=cls
        s.soft=0; s.gap=None; s.id=T.n; T.n+=1; tasks.append(s)
tasks=[]
def chain(lst,rel,p0,p1,hd,deps=()):
    prev=None; out=[]
    for i,(ins,cost) in enumerate(lst):
        l=ins if isinstance(ins,list) else [ins]; cls=0 if any(x.k in("vmem","ds") for x in l) else 1
        d=list(deps) if prev is None else [(prev,1 if (cls==0 or prev.ins[-1].k=="trans" or l[0].k=="perm") else 0)]
        prev=T(ins,cost,rel,int(p0+(p1-p0)*i/max(1,len(lst))),hd,d,cls); out.append(prev)
    return out
def maxchain(S,nm):
    v=lambda i:f"v{S+i}"; m=f"v{TM}"; m2=f"v{TM2}"
    L=[(valu("v_max3_f32",m,v(0),v(1),v(2)),1),(valu("v_max3_f32",m,m,v(3),v(4)),1),(valu("v_max3_f32",m,m,v(5),v(6)),1),
       (valu("v_max_f32",m,v(7),m),1),(valu("v_mov_b32",m2,m),1),(valu("v_permlane32_swap_b32",m,m2),2),(valu("v_max_f32",m,m2,m),1),
       (valu("v_mov_b32",m2,m),1),(valu("v_permlane16_swap_b32",m,m2),2),(valu("v_max_f32",m,m2,m),1)]
    L.append((valu("v_sub_f32",f"v{nm}","0",m),1) if PRE else (valu("v_mul_f32",f"v{nm}","s37",m),1))
    return L
for u,(t,j) in enumerate(units):
    S=SB+8*(u&1); P=PB+4*(u&1); nm=NEGM+4*(j%4); a=s0[u+1]; n=s0[u+2]-a
    hdc=[min(qk[u+2][4*(c>>1)]-1 if u+2<nU else TAIL, min(pv[u])-2) for c in range(4)]
    dep0=[]
    if u==ufirst[j] and not C.z:
        r=qk[u][7]+3; ch=chain(maxchain(S,nm),r,r,r+6,hdc[0]-4); dep0=[(ch[-1],0)]
        for x in ch: x.soft=3
        if PRE:
            nu=[x for x in range(u+1,nU) if units[x][1]==j][0]
            for i in range(1,4): T(valu("v_mov_b32",f"v{nm+i}",f"v{nm}"),1,r,r+10,max(qk[nu][0]-2,r-3),dep0).soft=3
            for x in ch: x.hd=min(x.hd,max(qk[nu][0]-2,r-3)); x.pd=min(x.pd,x.hd)
    pe=None; pf=None; ex=[]
    for e in range(8):
        rel=max(qk[u][4*(e>>2)+3]+4,a+(2*e+1)*n//17-C.eearly); pd=a+(2*e+1)*n//17; hd=hdc[e>>1]-1; d=[]
        if not PRE: f=valu("v_fma_f32",f"v{S+e}",f"v{S+e}","s34",f"v{nm}")
        elif u==ufirst[j] and not C.z: f=valu("v_add_f32",f"v{S+e}",f"v{nm}",f"v{S+e}")
        else: f=None
        if f: pf=T(f,1,rel,pd-1,hd,dep0+([(pf,0)] if pf else [])); d.append((pf,0)); pf.soft=4
        if C.efix and PRE and (C.z or u!=ufirst[j]) and rel<=pd<=hd: rel=hd=pd
        pe=T(valu("v_exp_f32",f"v{S+e}",f"v{S+e}"),C.ecost,rel,pd,hd,d+([(pe,C.edist)] if pe else [])); ex.append(pe); pe.soft=4
    for c in range(4):
        T(valu("v_cvt_pk_bf16_f32",f"v{P+c}",f"v{S+2*c}",f"v{S+2*c+1}"),1,max(pv[u-2]) if u>=2 else 0,a+(4*c+4)*n//17,hdc[c],[(ex[2*c+1],1)])
bar={t:dict(vm=set(),ds=set(),need=False) for t in range(-1,NS)}
def kread(t,f):
    kt=KP(t); d=aK+32*(t&1)+4*f
    return Ins(f"ds_read_b128 {R('a',d,4)}, v{vK+(f&3)} offset:{(kt&7)*8192+(f>>2)*4096}","ds",[f"v{vK+(f&3)}"],regs("a",d,4),tag=f"rK{t}")
KR={}; prevk=None; Kx={}
for t in range(1,NS):
    KR[t]=[]
    if KI(t)==t: Kx[t]=max(x for x in SY if x<t); bar[Kx[t]]["vm"].add(f"K{t}"); bar[Kx[t]]["need"]=True
    tog=[]
    if KP(t)>>3!=KP(t-1)>>3: tog=[T(valu("v_xor_b32",f"v{vK+i}","0x10000",f"v{vK+i}"),1,0,0,qk[first[t]][0]-C.dslead-1,[(prevk,0)]) for i in range(4)]
    for f in sorted(range(8),key=lambda f:qk[0][f]):
        rel=max(qk[last[t-2]][f] if t>=2 else 0, B[Kx[t]]+1 if t in Kx else 0); hd=max(rel,qk[first[t]][f]-C.dslead)
        prevk=T(kread(t,f),1,rel,hd-4,hd,([(prevk,0)] if prevk else [])+[(x,1) for x in tog],0); KR[t].append(prevk)
Vx={}; VR={}; prevv=None; vs={}
ring=0
for s in range(NS):
    Vx[s]=max(x for x in SY if x==0 or pv[first[s]][0]-B[x]>=22)
    if s<len(C.vx): Vx[s]=C.vx[s]
    bar[Vx[s]]["vm"].add(f"V{s}"); bar[Vx[s]]["need"]=True
    if s<len(C.vearly): vs[s]=C.vearly[s]
    elif C.rl:
        def relz(i):
            h=[max(x.hd for x in VR[p]) for p in range(s) if vs[p]==i]+[max(x.hd for x in KR[t]) for t in range(12,16) if t*8192<vslot(i)+VS and vslot(i)<t*8192+8192]
            return min([B[x] for x in SY if AR[x]>max(h)]+[10**6])
        vs[s]=min(range(7),key=relz)
    elif s>=35 and NS>35: vs[s]=[6,5,4,3,vs[32],vs[33],vs[34]][(s-35)%7]
    else: vs[s]=2-ring%3; ring+=1
    VR[s]=[]
    for db in range(8):
        for h in range(2):
            d=aV+32*(s&1)+4*db+2*h; off=vslot(vs[s])-VWIN+h*4*VB+8*(db&1); assert 0<=off<65536
            ins=Ins(f"ds_read_b64_tr_b16 {R('a',d,2)}, v{vV+(db>>1)} offset:{off}","ds",[f"v{vV+(db>>1)}"],regs("a",d,2),tag=f"rV{s}")
            rel=max(pv[last[s-2]][db] if s>=2 else 0,B[Vx[s]]+1); hd=max(rel,pv[first[s]][db]-C.dslead-VH.get(s,0))
            prevv=T(ins,1,rel,hd-8,hd,[(prevv,0)] if prevv else [],0); VR[s].append(prevv)
occ=[]
for t in list(range(16))+list(RP):
    lt=max(x for x in range(NS) if KI(x)==t)
    occ.append((AR[Kx[t]]+t*1e-3 if t else -2,f"K{t}",KP(t)*8192,KP(t)*8192+8192,max(x.hd for x in KR[lt]) if lt else 0,f"rK{lt}"))
for s in range(NS): occ.append((AR[Vx[s]]+0.5+s*1e-3,f"V{s}",vslot(vs[s]),vslot(vs[s])+VS,max(x.hd for x in VR[s]),f"rV{s}"))
def dma(name,h):
    i=int(name[1:]); L=[]
    if name[0]=="K": kt=i%16; sp,sb,m0,va,off=24,20,f"s29, {KP(i)*8192+h*4096}",vDK+h,0
    else: kt=i%16; sp,sb,m0,va,off=26,22,f"s30, {vslot(vs[i])+h*C.vpad}",vDV,1024*h
    if h==0: L+= [salu(f"s_add_u32 s{sp}, s{sb}, {kt*8192}"),salu(f"s_addc_u32 s{sp+1}, s{sb+1}, 0")]
    L.append(salu(f"s_add_u32 m0, {m0}",m0=1))
    L.append(Ins(f"global_load_lds_dwordx4 v{va}, s[{sp}:{sp+1}] offset:{off}"+(C.kl if name[0]=="K" else C.vl if i<16 else C.vl2).replace("_"," "),"vmem",[f"v{va}"],[],dma=1,tag=name))
    return L
def qoff(r,j): return [salu(f's_add_u32 s{r}, s92, {j*16384}'),salu(f's_and_b32 s{r}, s{r}, 0x1ffff'),salu(f's_add_u32 s{r}, s{r}, s31')]
def qload(j,ks):
    d=(R("v",land(j)+4*ks,4) if PRE else R("a",aQ+16*(j%5)+4*ks,4))
    L=[]
    return L+[Ins(f"buffer_load_dwordx4 {d}, v{vQ}, s[12:15], s{60+j} offen offset:{64*ks}{QM}","vmem",[f"v{vQ}"],opregs(d))]
def prescale(j):
    L=[]
    for i in range(16):
        x=f"v{land(j)+i}"; a,b=f"v{PT[2*(i&1)]}",f"v{PT[2*(i&1)+1]}"
        L+=[valu("v_lshlrev_b32",a,"16",x),valu("v_and_b32",b,"s35",x),valu("v_mul_f32",a,"s34",a),valu("v_mul_f32",b,"s34",b),
            valu("v_cvt_pk_bf16_f32",x,a,b)]+([] if C.dl==3 and j>=5 else [valu("v_accvgpr_write_b32",f"a{aQ+16*(j%5)+i}",x)])
    return L
loads=[]
for o in occ:
    fr=-1
    for p in occ:
        if p[0]<o[0] and p[2]<o[3] and o[2]<p[3]:
            y=min(x for x in SY if AR[x]>=p[4]+(1 if FL(x) else 4)); bar[y]["ds"].add(p[5]); bar[y]["need"]=True; fr=max(fr,B[y])
    assert fr<0 or fr<o[0]-20,(o,fr)
    loads.append((o[0],fr+1 if fr>=0 else -10**6,C.look2 if B[C.lt[0]]<o[0]<B[min(C.lt[1],NS-1)] else C.lookK if o[1][0]=="K" else C.lookV,[dma(o[1],h) for h in range(2)],o[1]))
pw={}
for j in range(8):
    e=qk[ufirst[j]][0]-2
    pw[j]=(max(e-(C.prew[min(j,len(C.prew)-1)] if isinstance(C.prew,list) else C.prew),(pw[j-1][1]+ (e-pw[j-1][1])//C.pdv) if j else -3),e) if PRE else (e,e)
    if j==0 or (j==1 and C.p1): pw[j]=(-3,-3)
    if C.dl==3:
        if j>=5: a0=pw[4][1]+C.pa; a1=B[C.pz]; pw[j]=(a0+(a1-a0)*(j-5)//3+1,min(e,a0+(a1-a0)*(j-4)//3))
        loads.append((C.qn[j] if j<len(C.qn) else pw[j][0],pw[j-3][1]+4 if j>=3 else -10**6,C.lookQ,[qload(j,ks) for ks in range(4)],f"Q{j}")); continue
    if C.dl and j>=C.dlj: pw[j]=(pw[j-1][1]+1,e)
    rel=-10**6
    if PRE and j>=3: rel=pw[j-1 if j>3 else 0][1]+1
    if C.dl and j>=3: rel=-10**6 if j==3 else pw[j-2 if j>4 else 0][1]+1
    if C.dl and j>=C.dlj:
        t=START[j-1]-C.qs; loads.append((AR[Vx[t+2]]+0.7,max(rel,B[t]+3),10**4,[qload(j,ks) for ks in range(4)],f"Q{j}")); continue
    if not PRE and j>=5: rel=qk[ulast[j-5]][7]
    loads.append((C.qn[j] if j<len(C.qn) else pw[j][0],rel,C.lookQ,[qload(j,ks) for ks in range(4)],f"Q{j}"))
loads.sort(key=lambda x:(max(x[1],x[0]-x[2],0),x[0]) if C.srt else x[0])
lr=0; fh=0; proloads=[]; QL={}; prev=None; inpro=True
for need,rel,look,il,key in loads:
    if inpro and rel<0 and need<=C.npro: proloads+=[i for l in il for i in l]; continue
    inpro=False
    for l in il:
        r=max(rel,int(need)-look,C.lmin)
        if need>B[16]: r=max(r,min(lr+C.lsp,int(need)-70)); lr=r
        for i in l:
            sa=i.k=="salu"; dist=0 if (prev is None or (sa and prev.cls==-2) or (not sa and prev.cls==0)) else 1
            if not sa: fh=max(r,fh+C.flstep)
            prev=T(i,0 if sa else 2,max(0,r-4) if sa else r,r,min(max(r,int(need)-1),fh if fh<C.fl and not sa else 10**6),[(prev,dist)] if prev else [],-2 if sa else 0)
    QL[key]=prev
PS={}
for j in range(2 if C.p1 else 1,8):
    if PRE:
        rel=max(pw[j][0],qk[ulast[j-5]][7] if j>=5 and C.dl<3 else 0)
        PS[j]=chain([(i,1) for i in prescale(j)],rel,rel,pw[j][1],pw[j][1] if C.dl<3 or j<5 else qk[ufirst[j]][0]-2,([(QL[f"Q{j}"],1)] if f"Q{j}" in QL else [])+([(PS[j-1][-1],0)] if j-1 in PS else []))
def norm(j):
    o=O(j); L=[(valu("v_accvgpr_read_b32",f"v{RL}",f"a{aL+4*(j%5)}"),1),
       (Ins(f"v_cmp_ngt_f32 s[{70+2*j}:{71+2*j}], s36, v{RL}","valu",[f"v{RL}"],[]),1),(valu("v_rcp_f32",f"v{RR}",f"v{RL}"),2)]
    if C.z: L[1:2]=[(valu("v_subrev_u32",f"v{TM}","s36",f"v{RL}"),1),(Ins(f"v_cmp_lt_u32 s[{70+2*j}:{71+2*j}], s33, v{TM}","valu",[f"v{TM}"],[]),1)]
    for n in range(4):
        L+=[(valu("v_mul_f32",f"v{o+8*n+i}",f"v{RR}",f"v{o+8*n+i}"),1) for i in range(8)]
        sg=o+8*n if C.dl==3 else STG+4*n
        L+=[(valu("v_cvt_pk_bf16_f32",f"v{sg+i}",f"v{o+8*n+2*i}",f"v{o+8*n+2*i+1}"),1) for i in range(4)]
        d=regs("v",sg,4)
        L.append(([Ins(f"buffer_store_dwordx4 {R('v',sg,4)}, v{vQ}, s[16:19], s{60+j} offen offset:{64*n}{ST if j<C.stn else C.st2.replace('_',' ')}","vmem",d+[f"v{vQ}"],[],store=1,data=set(d))],2))
    return L
pn=None; NT=[]; p1=0
for j in range(8):
    rel=pv[ulast[j]][8]+4; hd=TAIL
    if j+5<8: hd=pv[ufirst[j+5]][0]-3
    if j+1<8: hd=min(hd,max(pv[ulast[j+1]][8]+3,rel+C.nmin))
    if j>=C.nj: hd=min(hd,rel+C.nhd)
    p0=max(rel,min(p1,hd-40)); p1=min(hd,p0+C.nspan)
    for jj,a,b in C.nw:
        if jj==j: p0=max(rel,B[a]); p1=hd=B[b]
    pn=chain(norm(j),rel,p0-C.nb*(j>=C.nj),p1-C.nb*(j>=C.nj),hd,[(pn[-1],0)] if pn else []); NT+=pn
    if j>=C.lf:
        for x in pn:
            if x.ins[0].t.startswith("v_mul"): x.rel=max(x.rel,pv[ulast[j]][(int(x.ins[0].t.split("v")[-1])-O(j))>>2]+3); x.hd=max(x.hd,x.rel)
    if j<C.nj:
        for x in pn:
            if x.ins[0].k=="vmem": x.rel=max(x.rel,x.pd-C.sear)
    if C.sal and j<C.nj:
        E=START[j]+16
        for n,i in enumerate([i for i,x in enumerate(pn) if x.ins[0].k=="vmem"]):
            x=pn[i]; x.rel=B[E+C.sal[n]]+5; x.pd=x.rel; x.hd=x.rel+6
            if i+1<len(pn): pn[i+1].deps=[(pn[i-1],0)]
            for k in range(i):
                if pn[k].ins[0].k!="vmem": pn[k].hd=min(pn[k].hd,x.hd-1); pn[k].pd=min(pn[k].pd,x.hd-1-(i-k))
pc_=None; stubs=[]; cmpw=set()
for t in range(0 if C.b0>=0 else 1,NS):
    if not bar[t]["need"]: continue
    if not FL(t): T(Ins("s_barrier","bar",vm_tags=bar[t]["vm"],ds_tags=bar[t]["ds"]),2,B[t],B[t],B[t],[],-1); continue
    a=AR[t]; r=min(max(a,B[t]-C.fr),B[t]-1)
    w=T(Ins(f"ds_write_b32 v{vFW}, v{vCNT}","ds",[f"v{vFW}",f"v{vCNT}"],[],vm_tags=bar[t]["vm"]),1,a,a,a,[(pc_,1)] if pc_ else [],0)
    w=T(Ins(f"ds_read_b32 v{vFL}, v{vFR}","ds",[f"v{vFR}"],[f"v{vFL}"]),1,r,r,r,[(w,0)],0)
    w=T(Ins(f"v_cmp_gt_u32 vcc, v{vCNT}, v{vFL}","valu",[f"v{vCNT}",f"v{vFL}"],[]),1,max(r,B[t]-C.fc),max(r,B[t]-C.fc),max(r,B[t]-C.fc),[(w,0)])
    w=T(salu(f"s_cbranch_vccnz L_r{t}\nL_b{t}:"),0,B[t],B[t],B[t],[(w,1)],-2); cmpw.update((B[t]-1,B[t]))
    pc_=T(valu("v_add_u32",f"v{vCNT}","1",f"v{vCNT}"),1,B[t],B[t]+4,B[t]+1 if t+1<NS and AR[t+1]<B[t]+12 else B[t]+10,[(w,0)])
    stubs.append(f"L_r{t}:\nds_read_b32 v{vFL}, v{vFR}\ns_waitcnt lgkmcnt(0)\nv_cmp_gt_u32 vcc, v{vCNT}, v{vFL}\ns_cbranch_vccnz L_r{t}\ns_branch L_b{t}")
def pfetch(first):
    L=[] if first else [(Ins(f"v_add_co_u32 v{vPF}, s[86:87], s88, v{vPF}","valu",[f"v{vPF}"],[f"v{vPF}"],wsgpr=1),1),(Ins(f"v_addc_co_u32 v{vPF+1}, s[86:87], 0, v{vPF+1}, s[86:87]","valu",[f"v{vPF+1}"],[f"v{vPF+1}"]),1)]
    return L+[(Ins(f"global_load_ubyte a232, v[{vPF}:{vPF+1}], off","vmem",regs("v",vPF,2),[]),2)]
if C.pf:
    pp=None
    for t in C.pfx:
        c=chain(pfetch(0),B[t]-10,B[t]-10,B[t],B[t]+8,[(pp,1)] if pp else []); c[1].deps=[(c[0],1)]; pp=c[-1]; pp.rel=pp.pd=B[t]+5
def drop(f):
    global tasks
    dead=[x for x in tasks if f(x)]; ds_=set(id(x) for x in dead); tasks=[x for x in tasks if id(x) not in ds_]
    for x in tasks: x.deps=[d for d in x.deps if id(d[0]) not in ds_]
if 'd' in C.abl: drop(lambda x:any(i.meta.get('dma') for i in x.ins))
if 'b' in C.abl: drop(lambda x:x.ins[0].k=='bar')
for x in tasks:
    if x.ins[0].k=='bar':
        if 'B' in C.abl: x.ins[0].t="s_nop 0"
        if 'W' in C.abl: x.ins[0].meta["vm_tags"]=set()
if 'p' in C.abl: drop(lambda x:any(x in PS[j] for j in PS))
if 'q' in C.abl: drop(lambda x:'buffer_load' in x.ins[-1].t)
if 's' in C.abl: drop(lambda x:'buffer_store' in x.ins[-1].t)
if 'f' in C.abl: drop(lambda x:any(k in x.ins[0].t for k in (f"v{vCNT}",f"v{vFL}","L_r"))); stubs=[]
if 'F' in C.abl: drop(lambda x:"L_r" in x.ins[0].t); stubs=[]
if 'G' in C.abl: drop(lambda x:any(k in x.ins[0].t for k in (f"v{vFL}","L_r"))); stubs=[]
if 'e' in C.abl: drop(lambda x:'v_exp' in x.ins[0].t)
if 'c' in C.abl: drop(lambda x:'v_cvt_pk' in x.ins[0].t)
if 'm' in C.abl: drop(lambda x:x.soft==3 or 'v_add_f32' in x.ins[0].t)
if 'k' in C.abl: drop(lambda x:'ds_read_b128' in x.ins[0].t)
if 'v' in C.abl: drop(lambda x:'ds_read_b64' in x.ins[0].t)
if 'n' in C.abl: drop(lambda x:x in NT)
gaps=[[] for _ in range(TAIL+1)]; used=[0]*(TAIL+1); forced=set(); sused=[0]*(TAIL+1)
def place(x,g,fo=False):
    for d,dist in x.deps:
        if d.gap is None: assert fo; place(d,g,True)
        if d.gap==g and x.cls<d.cls: forced.add(g)
    assert x.rel-x.soft<=g,(x.ins[0].t,x.rel,g)
    x.gap=g; gaps[g].append(x); used[g]+=x.cost
    if x.cls==-2:
        used[g]+=sused[g]>0; sused[g]+=1
def dsx(x,g): return x.ins[0].k=='ds' and sum(y.ins[0].k=='ds' for y in gaps[g])>=C.dsm and x.hd-g>C.dsu
for x in tasks:
    if x.ins[0].k=='ds': x.pd-=C.dsb
pend=sorted(tasks,key=lambda x:(x.rel,x.id)); act=[]; pi=0
for g in range(TAIL+1):
    while pi<len(pend) and min(pend[pi].rel,pend[pi].hd)<=g: act.append(pend[pi]); pi+=1
    for x in sorted([x for x in tasks if x.gap is None and x.hd<=g],key=lambda x:(x.cls>=0,x.id)):
        if x.gap is None: place(x,g,True)
    if not sused[g]:
        rs=sorted([x for x in act if x.gap is None and x.cls==-2 and x.rel<=g and all(d.gap is not None and d.gap+dist<=g for d,dist in x.deps)],key=lambda x:(x.pd,x.id))
        if rs: place(rs[0],g)
    while used[g]<2:
        act=[x for x in act if x.gap is None]
        rd=sorted([x for x in act if x.rel<=g and all(d.gap is not None and d.gap+dist<=g for d,dist in x.deps)],key=lambda x:(x.pd,x.id))
        rd=[x for x in rd if x.cost<=2-used[g] and x.cls!=-2 and not dsx(x,g)]
        if not rd: break
        x=rd[0]
        if used[g]==0 and x.cost==1:
            more=any(y.cost==1 for y in rd[1:]) or any(y.cost==1 and y.rel<=g and any(d is x and dist==0 for d,dist in y.deps) and all(d is x or (d.gap is not None and d.gap+dist<=g) for d,dist in y.deps) for y in act)
            two=[y for y in rd if y.cost==2]
            if not more and two and x.hd>g+1: x=two[0]
        place(x,g)
    while C.cap>used[g]:
        rd=sorted([x for x in act if x.gap is None and x.rel<=g and x.pd+C.late+(C.dsb if x.ins[0].k=='ds' else 0)<=g and x.cls!=-2 and not dsx(x,g) and x.cost<=C.cap-used[g] and all(d.gap is not None and d.gap+dist<=g for d,dist in x.deps)],key=lambda x:(x.pd,x.id))
        if not rd: break
        place(rd[0],g)
assert all(x.gap is not None for x in tasks)
over=sum(max(0,used[g]-2) for g in range(NG)); idle=sum(max(0,2-used[g]) for g in range(NG))
L=[]
def S_(txt):
    for l in txt.strip().split("\n"): L.append(salu(l.strip()))
def V_(op,d,*s,**m): L.append(valu(op,d,*s,**m))
nst=[0]
nd=[0]
def stamp():
    if C.diag>=0:
        if nd[0]==0: L.append(Ins('s_memrealtime s[46:47]\ns_memtime s[50:51]','salu'))
        if nd[0]==C.diag: L.append(Ins('s_memrealtime s[48:49]','salu')); L.append(Ins('s_waitcnt lgkmcnt(0)','wait'))
        nd[0]+=1
    if C.stamps and C.cyc==2:
        L.append(Ins("s_memtime s[98:99]\ns_memrealtime s[100:101]","salu")); L.append(Ins("s_waitcnt lgkmcnt(0)","wait")); L.append(Ins(f"v_writelane_b32 v{vST}, s100, {nst[0]}\nv_writelane_b32 v{vST}, s98, {32+nst[0]}","valu")); nst[0]+=1
    elif C.stamps and nst[0]<28:
        L.append(Ins(("s_memtime" if C.cyc else "s_memrealtime")+" s[98:99]","salu")); L.append(Ins("s_waitcnt lgkmcnt(0)","wait")); L.append(Ins(f"v_writelane_b32 v{vST}, s98, {nst[0]}","valu")); nst[0]+=1
S_(f"s_cmp_ge_u32 s2, {0 if C.empty else 256}\ns_cbranch_scc1 L_end\ns_load_dwordx4 s[4:7], s[0:1], 0\ns_load_dwordx4 s[8:11], s[0:1], 16")
if C.stamps: S_("s_memtime s[96:97]\ns_load_dwordx2 s[40:41], s[0:1], 40")
stamp()
W_,I_,G_,X_,Y_,Z_="v64","v65","v66","v67","v68","v69"
V_("v_lshrrev_b32",W_,"6","v0"); S_("s_lshr_b32 s42, s2, 3")
def pfx0():
    n=128*(len(C.pfx)+1)
    S_("s_getpc_b64 s[44:45]\nL_pc:"); V_("v_lshl_add_u32","v72","s42","2",W_); V_("v_mul_u32_u24","v72",f"(L_slow-L_pc+{n-1})/{n}","v72")
    L.append(Ins(f"v_mad_u64_u32 v[{vPF}:{vPF+1}], vcc, v72, 1, s[44:45]","valu",[],[])); L.append(pfetch(1)[0][0])
if C.pf==-1: pfx0()
V_("v_and_b32",I_,"15","v0"); V_("v_bfe_u32",G_,"v0","4","2"); V_("v_lshlrev_b32","v70","8",I_); V_("v_lshl_add_u32",f"v{vQ}",G_,"4","v70")
S_("s_and_b32 s3, s2, 7\ns_lshl_b32 s3, s3, 5\ns_add_u32 s3, s3, s42\ns_lshl_b32 s31, s3, 17")
V_("v_lshl_add_u32","v71",W_,"12",f"v{vQ}"); V_("v_add_u32","v71","s31","v71")
L.append(Ins("s_waitcnt lgkmcnt(0)","wait"))
assert all("s60 " in i.t for i in proloads[:4]); proloads=proloads[4:]
for ks in range(4): L.append(Ins(f"global_load_dwordx4 {R('v',land(0)+4*ks,4)}, v71, s[4:5] offset:{64*ks}","vmem",["v71"],regs("v",land(0)+4*ks,4)))
if C.p1==1:
    assert all("s61 " in i.t for i in proloads[:4]); proloads=proloads[4:]; C.nA-=4; V_("v_add_u32","v73","0x4000","v71")
    for ks in range(4): L.append(Ins(f"global_load_dwordx4 {R('v',land(1)+4*ks,4)}, v73, s[4:5] offset:{64*ks}","vmem",["v73"],regs("v",land(1)+4*ks,4)))
L.append(Ins(f"v_readfirstlane_b32 s28, {W_}","valu",[W_],[],rfl=1,wsgpr=1))
V_("v_lshl_add_u32",X_,W_,"2",G_); V_("v_xor_b32",Y_,I_,X_); V_("v_lshlrev_b32",X_,"8",X_)
V_("v_lshl_add_u32",f"v{vDK}",Y_,"4",X_); V_("v_add_u32",f"v{vDK+1}","0x1000",f"v{vDK}")
S_("s_lshr_b32 s42, s3, 2\ns_lshl_b32 s42, s42, 17\ns_lshl_b32 s29, s28, 10\ns_add_u32 s20, s6, s42\ns_addc_u32 s21, s7, 0")
assert proloads[5].meta.get("tag")=="K0"; L+=proloads[:6]; proloads=proloads[6:]; C.nA-=6
S_("s_lshl_b32 s43, s28, 12\ns_add_u32 s31, s31, s43\ns_mov_b32 s12, s4\ns_mov_b32 s13, s5\ns_mov_b32 s14, 0x2000000\ns_mov_b32 s15, 0x20000\ns_add_u32 s61, s31, 16384")
while "s61 " in proloads[0].t: L.append(proloads.pop(0)); C.nA-=1
V_("v_lshlrev_b32",X_,"2",G_); V_("v_xor_b32",X_,I_,X_); V_("v_lshlrev_b32",X_,"4",X_)
V_("v_lshl_add_u32",X_,G_,"8",X_); V_("v_lshl_add_u32",f"v{vDV}",W_,"11",X_)
S_(f"s_mul_i32 s30, s28, {2*VB}\ns_add_u32 s22, s8, s42\ns_addc_u32 s23, s9, 0")
if C.stp: stamp()
pl=[]; cur=[]
for i in proloads:
    cur.append(i)
    if i.k=="vmem": pl.append(cur); cur=[]
if C.pf>0: pl.insert(C.pf,[pfetch(1)[0][0]])
if C.probe:
    pq=[l for need,rel,look,il,key in loads if rel<0 and key[0] in C.probe for l in il][:C.pn]
    print("probe:"," ".join(key for need,rel,look,il,key in loads if rel<0 and key[0] in C.probe),file=sys.stderr)
    for i,x in enumerate(pq):
        L+=x
        if i%12==11: stamp()
    for n in range(len(pq)-4,-1,-4): L.append(Ins(f"s_waitcnt vmcnt({n})","wait")); stamp()
    L.append(salu("s_mov_b64 s[38:39], 0\ns_branch L_fin"))
if C.probe: C.stamps=0
for x in pl[:C.nA]: L+=x
pl=pl[C.nA:]
if C.stp: stamp()
for j in (0,2,3,4,5,6,7): S_(f"s_add_u32 s{60+j}, s31, {j*16384}")
if C.pf: n=128*(len(C.pfx)+1); S_(f"s_mov_b32 s88, ((L_slow-L_pc+{n-1})/{n})*128")
S_(f"s_mov_b32 s18, 0x2000000\ns_mov_b32 s19, 0x20000\ns_mov_b32 s16, s10\ns_mov_b32 s17, s11\ns_mov_b32 s34, {CSC:#x}\ns_mov_b32 s35, 0xffff0000\ns_mov_b32 s36, {(127-C.zr)<<23 if C.z else C.thr:#x}\ns_mov_b32 s33, {(2*C.zr)<<23:#x}\ns_mov_b32 s37, {CSC|0x80000000:#x}\ns_mov_b64 s[38:39], {-1 if C.force_slow else 0}")
for ks in range(4):
    V_("v_add_u32",X_,str(4*ks),G_); V_("v_xor_b32",X_,I_,X_); V_("v_lshl_add_u32",f"v{vK+ks}",X_,"4","v70")
V_("v_bfe_u32",X_,"v0","2","2"); V_("v_and_b32",Y_,"3","v0"); V_("v_mul_u32_u24",Z_,str(VB),G_)
V_("v_lshl_add_u32",Z_,X_,"8",Z_); V_("v_lshl_add_u32",Z_,Y_,"4",Z_); V_("v_add_u32",Z_,hex(VWIN),Z_)
V_("v_mul_u32_u24",f"v{vFR}","0x104",Y_); V_("v_add_u32",f"v{vFR}",hex(FLB),f"v{vFR}")
for n in range(4):
    V_("v_xor_b32",Y_,str(n),X_); V_("v_lshl_add_u32",f"v{vV+n}",Y_,"6",Z_)
V_("v_mov_b32",X_,"0x3f803f80")
if C.one4: V_("v_and_b32",Y_,"3","v0"); L.append(Ins(f"v_cmp_eq_u32 vcc, 0, {Y_}\ns_nop 1\nv_cndmask_b32 {X_}, 0, {X_}, vcc","valu",[Y_,X_],[X_]))
for i in range(4): V_("v_accvgpr_write_b32",f"a{aONE+i}",X_)
V_("v_lshlrev_b32","v0","2","v0"); V_("v_add_u32","v0",hex(FLB),"v0"); V_("v_mov_b32",f"v{vCNT}","0")
L.append(Ins(f"ds_write_b32 v{vFW}, v{vCNT}","ds",[f"v{vFW}",f"v{vCNT}"],[],tag="fi")); V_("v_mov_b32",f"v{vCNT}","1")
ps=prescale(0)+(prescale(1) if C.p1 else []); nq=len(ps)//24
npl=len(pl)
for q4 in range(nq):
    if q4==nq-C.bq:
        stamp(); L.append(Ins("s_barrier","bar",vm_tags={"K0"}|(bar[0]["vm"] if C.p1 else set()),ds_tags={"fi"})); L+=[kread(0,f) for f in sorted(range(8),key=lambda f:qk[0][f])]
    if C.stp: L+=ps[24*q4:24*q4+24]; stamp()
    else: L+=ps[24*q4:24*q4+24]
    for x in pl[-(-npl*q4//nq):-(-npl*(q4+1)//nq)]: L+=x
if C.b0<0 and not C.p1: L.append(Ins("s_barrier","bar",vm_tags=bar[0]["vm"],ds_tags=set()))
stamp()
stg={qk[first[t]][0] for t in range(NS) if t%C.stev==0 and t>0}
for g in range(TAIL+1):
    if g in stg or (C.stp and g in (8,16,24,33,67,84,101,118)): stamp()
    if g<NG: L.append(M[g])
    xs=gaps[g] if g in forced or g>=NG else sorted(gaps[g],key=lambda x:x.cls+(C.eord*0.5 if x.hd==x.rel and x.ins[0].k=='trans' else 0))
    post=[]
    if C.stt and g in (NG-17,NG-9,NG): stamp()
    for x in xs:
        L+=x.ins
        if C.stt and g>=NG-C.stt and x.ins[-1].meta.get("store"): stamp()
L=waits(L,C.wg,C.wa)
if C.wup: L=hoist(L)
L,nn=hazards(L)
body=[i.t for i in L]
if C.probe: body.append("L_fin:"); C.stamps=1
if C.stamps:
    tm="s_memtime" if C.cyc==1 else "s_memrealtime"
    body.append(f"{tm} s[90:91]\ns_waitcnt vmcnt(0)\n{tm} s[100:101]\ns_memtime s[98:99]\ns_waitcnt lgkmcnt(0)")
    for i in range(nst[0],29): body.append(f"v_writelane_b32 v{vST}, s90, {i}")
    body.append(f"v_writelane_b32 v{vST}, s100, 29\nv_writelane_b32 v{vST}, s96, 30\nv_writelane_b32 v{vST}, s98, 31")
    body.append("s_mov_b32 s42, 0x10000000\ns_mov_b32 s43, 0x20000\ns_lshl_b32 s3, s2, 2\ns_add_u32 s3, s3, s28\ns_lshl_b32 s3, s3, 8\nv_mbcnt_lo_u32_b32 v88, -1, 0\nv_mbcnt_hi_u32_b32 v88, -1, v88\nv_lshlrev_b32 v88, 2, v88")
    body.append(f"buffer_store_dword v{vST}, v88, s[40:43], s3 offen")
for j in range(0 if C.probe else 8): body.append(f"s_or_b64 s[38:39], s[38:39], s[{70+2*j}:{71+2*j}]")
if C.diag>=0:
    if C.diag==98: body.append("s_waitcnt vmcnt(0)\ns_memrealtime s[48:49]\ns_waitcnt lgkmcnt(0)")
    if C.diag==99: body.append("s_waitcnt vmcnt(0)\ns_memtime s[48:49]\ns_waitcnt lgkmcnt(0)\ns_sub_u32 s48, s48, s50\ns_lshr_b32 s48, s48, 5\ns_add_u32 s48, s48, s46")
    body.append("s_sub_u32 s48, s48, s46\ns_mul_i32 s48, s48, 4\ns_add_u32 s48, s48, 6000\nL_spin:\ns_memrealtime s[52:53]\ns_waitcnt lgkmcnt(0)\ns_sub_u32 s52, s52, s46\ns_cmp_lt_u32 s52, s48\ns_cbranch_scc1 L_spin")
body.append("s_cmp_eq_u64 s[38:39], 0\ns_cbranch_scc1 L_end")
def slow():
    X=["L_slow:"]; A=X.append; nop="s_nop 7\ns_nop 1"
    A("s_waitcnt vmcnt(0) lgkmcnt(0)\ns_barrier\ns_mul_i32 s46, s28, 40960\ns_lshl_b32 s47, s28, 11")
    A(f"s_sub_u32 s48, s46, {VWIN}\nv_subrev_u32 v{vDV}, s47, v{vDV}\nv_add_u32 v{vDK}, 0x1000, v{vQ}")
    for n in range(4): A(f"v_add_u32 v{vV+n}, s48, v{vV+n}")
    A("s_mov_b32 s44, 0\nL_sj:\ns_lshl_b32 s32, s44, 14\ns_add_u32 s32, s32, s31")
    for ks in range(4): A(f"buffer_load_dwordx4 a[{aQ+4*ks}:{aQ+4*ks+3}], v{vQ}, s[12:15], s32 offen offset:{64*ks}")
    def kq():
        for f in range(8): A(f"global_load_dwordx4 a[{4*f}:{4*f+3}], v{vQ if f<4 else vDK}, s[24:25] offset:{64*(f&3)}")
    def qkm():
        for f in range(8):
            d=R("v",SB+4*(f>>2),4); A(mfma(d,R("a",4*f,4),R("a",aQ+4*(f&3),4),d if f&3 else "0").t)
        A(nop)
    adv="s_add_u32 s24, s24, 8192\ns_addc_u32 s25, s25, 0\ns_add_u32 s45, s45, 1\ns_cmp_lt_u32 s45, 16"
    A(f"v_mov_b32 v{TM}, 0xff800000\ns_mov_b64 s[24:25], s[20:21]\ns_mov_b32 s45, 0\nL_s1:")
    kq(); A("s_waitcnt vmcnt(0)"); qkm()
    for i in range(4): A(f"v_max3_f32 v{TM}, v{TM}, v{SB+2*i}, v{SB+2*i+1}")
    A(adv+"\ns_cbranch_scc1 L_s1")
    for p in ("32","16"): A(f"v_mov_b32 v{TM2}, v{TM}\ns_nop 1\nv_permlane{p}_swap_b32 v{TM}, v{TM2}\ns_nop 1\nv_max_f32 v{TM}, v{TM2}, v{TM}")
    A(f"v_mul_f32 v{TM}, s37, v{TM}")
    for i in range(32): A(f"v_mov_b32 v{OB+i}, 0")
    for i in range(4): A(f"v_accvgpr_write_b32 a{aL+i}, 0")
    A("s_mov_b64 s[24:25], s[20:21]\ns_mov_b64 s[26:27], s[22:23]\ns_mov_b32 s45, 0\nL_s2:")
    kq()
    for bi in range(8):
        A(f"s_add_u32 m0, s46, {bi*VB-(bi&3)*1024}\ns_nop 0\nglobal_load_lds_dwordx4 v{vDV}, s[26:27] offset:{(bi&3)*1024}")
        if bi&3==3: A("s_add_u32 s26, s26, 4096\ns_addc_u32 s27, s27, 0")
    A("s_waitcnt vmcnt(0)")
    for db in range(8):
        for h in range(2): A(f"ds_read_b64_tr_b16 a[{aV+4*db+2*h}:{aV+4*db+2*h+1}], v{vV+(db>>1)} offset:{h*4*VB+8*(db&1)}")
    qkm()
    for e in range(8): A(f"v_fma_f32 v{SB+e}, v{SB+e}, s34, v{TM}")
    for e in range(8): A(f"v_exp_f32 v{SB+e}, v{SB+e}")
    A("s_nop 0")
    for c in range(4): A(f"v_cvt_pk_bf16_f32 v{PB+c}, v{SB+2*c}, v{SB+2*c+1}")
    A("s_waitcnt lgkmcnt(0)\ns_nop 1")
    for db in range(8): A(mfma(R("v",OB+4*db,4),R("a",aV+4*db,4),R("v",PB,4),R("v",OB+4*db,4)).t)
    A(mfma(R("a",aL,4),R("a",aONE,4),R("v",PB,4),R("a",aL,4)).t)
    A(nop+"\n"+adv+"\ns_cbranch_scc1 L_s2")
    A(f"v_accvgpr_read_b32 v{RL}, a{aL}\nv_rcp_f32 v{RR}, v{RL}\ns_nop 0")
    for i in range(32): A(f"v_mul_f32 v{OB+i}, v{RR}, v{OB+i}")
    for i in range(16): A(f"v_cvt_pk_bf16_f32 v{STG+i}, v{OB+2*i}, v{OB+2*i+1}")
    for n in range(4): A(f"buffer_store_dwordx4 v[{STG+4*n}:{STG+4*n+3}], v{vQ}, s[16:19], s32 offen offset:{64*n}")
    A("s_waitcnt vmcnt(0)\ns_add_u32 s44, s44, 1\ns_cmp_lt_u32 s44, 8\ns_cbranch_scc1 L_sj")
    return X
body+=slow(); body.append("s_branch L_end"); body+=stubs; body.append("L_end:")
hdr=open("standalone__gqa_softmax__near_ridge.s.ref").read().split("; Override")[0]
txt=hdr+f"""; @launch grid=(256,1,1) block=(256,1,1) lds=163840
; Generated by a hand-written scheduler script. One workgroup per (batch, q head), one wave per SIMD.
; S^T = K Q^T and O^T = V^T P^T with 16x16x32 bf16 MFMA; row sums by an MFMA with a ones operand.
; Softmax shift stand-in is 0, checked at run time: a row sum outside [2^-40, 2^40] (or NaN) sends the wave to the
; exact path at the end (true row max, then the same computation), which rewrites its rows.
.amdgcn_target "amdgcn-amd-amdhsa--gfx950"
.text
.globl {KN}
.p2align 8
.type {KN},@function
{KN}:
"""+"\n".join(body)+f"""
s_endpgm
.section .rodata,"a"
.p2align 6
.amdhsa_kernel {KN}
  .amdhsa_next_free_vgpr 512
  .amdhsa_next_free_sgpr 102
  .amdhsa_accum_offset 256
  .amdhsa_group_segment_fixed_size 0
  .amdhsa_kernarg_size 48
  .amdhsa_user_sgpr_count 2
  .amdhsa_user_sgpr_kernarg_segment_ptr 1
  .amdhsa_system_sgpr_workgroup_id_x 1
.end_amdhsa_kernel
"""
open(sys.argv[1],"w").write(txt)
print('model/step:',' '.join(str(sum(16+4*max(0,used[g]-2) for g in range(qk[first[t]][0],qk[first[t+C.stev]][0]))) for t in range(0,NS-C.stev,C.stev)),file=sys.stderr)
from collections import Counter
print(f"NS={NS} gaps={NG} over={over} idle={idle} nops={nn} est_cyc={NG*16+over*4} forced={len(forced)} proloads={sum(i.k=='vmem' for i in proloads)}",dict(Counter(i.k for i in L)))
if C.dbg:
    ev=[]
    for x in tasks:
        i=x.ins[-1]
        if i.k=="vmem": ev.append((x.gap,i.meta.get("tag") or i.t[7:12]+i.t.split(", ")[-1][:3]))
        if i.meta.get("vm_tags") is not None: ev.append((x.gap,"WAIT:"+",".join(sorted(i.meta["vm_tags"]))))
    for s in range(NS): ev.append((B[s],f"\nB{s}")); ev.append((VR[s][0].gap,f"rV{s}[")); ev.append((VR[s][-1].gap,f"rV{s}]"))
    for j in PS: ev.append((PS[j][0].gap,f"ps{j}[")); ev.append((PS[j][-1].gap,f"ps{j}]"))
    print(" ".join(f"{n}@{g}" for g,n in sorted(ev)))
    print("idle:"," ".join(str(sum(max(0,2-used[g]) for g in range(qk[first[t]][0],qk[first[t+1]][0]))) for t in range(NS-1)))
```
